```python
import torch

def _softmax(x, axis=-1):
    return torch.softmax(x, dim=axis)
def _gelu(x):
    return torch.nn.functional.gelu(x, approximate="tanh")
def _silu(x):
    return torch.nn.functional.silu(x)
def _sigmoid(x):
    return torch.sigmoid(x)
def _layernorm(x, axis=-1, eps=1e-5):
    m = x.mean(dim=axis, keepdim=True)
    v = x.var(dim=axis, keepdim=True, unbiased=False)
    return (x - m) / torch.sqrt(v + eps)
def _scatter_add(tgt, idx, src, axis=0):
    return tgt.clone().index_add_(axis, idx, src)
def _segment_sum(src, seg, n):
    out = torch.zeros((n,) + src.shape[1:], dtype=src.dtype)
    return out.index_add_(0, seg, src)
def _pad(x, pw):
    flat = tuple(v for pair in reversed(pw) for v in pair)
    return torch.nn.functional.pad(x, flat)

kernel_name = 'standalone__gqa_block_cached__sampling'

def setup_inputs():

    _w = (lambda a: (lambda t: t.to(torch.bfloat16) if t.is_floating_point() else t)(torch.as_tensor(a)))
    B, Sq, D = 8, 4, 512
    Hq, Hkv, Sk, Dh = 32, 8, 4096, 128
    assert Hq % Hkv == 0, (Hq, Hkv)
    return {
        "x": _w((lambda *s: torch.randn(*s, dtype=torch.bfloat16) * 0.8)(B, Sq, D)),
        "k_cache": _w((lambda *s: torch.randn(*s, dtype=torch.bfloat16) * 0.8)(B, Hkv, Sk, Dh)),
        "v_cache": _w((lambda *s: torch.randn(*s, dtype=torch.bfloat16) * 0.05)(B, Hkv, Sk, Dh)),
        "wq": _w((lambda *s: torch.randn(*s, dtype=torch.bfloat16) * 0.8)(D, Hq * Dh) * (D ** -0.5)),
        "wo": _w((lambda *s: torch.randn(*s, dtype=torch.bfloat16) * 0.05)(Hq * Dh, D) * ((Hq * Dh) ** -0.5)),
    }

def reference(x, k_cache, v_cache, wq, wo):
    B, Sq, D = x.shape
    Hq, Dh = 32, 128
    Hkv = k_cache.shape[1]
    rep = Hq // Hkv
    q = (lambda x, *d: x.permute(*d))((x @ wq).reshape(B, Sq, Hq, Dh), 0, 2, 1, 3)
    k = (lambda x, n, axis: torch.repeat_interleave(x, n, dim=axis))(k_cache, rep, axis=1)
    v = (lambda x, n, axis: torch.repeat_interleave(x, n, dim=axis))(v_cache, rep, axis=1)
    scores = torch.einsum("bhqd,bhkd->bhqk", q, k) * (Dh ** -0.5)
    p = _softmax(scores, axis=-1)
    o = torch.einsum("bhqk,bhkd->bhqd", p, v)
    return (lambda x, *d: x.permute(*d))(o, 0, 2, 1, 3).reshape(B, Sq, Hq * Dh) @ wo
```

```python
import re

def v(n): return f"v{n}"
def vr(b, n): return f"v[{b}:{b+n-1}]" if n > 1 else f"v{b}"
def s(n): return f"s{n}"
def sr(b, n): return f"s[{b}:{b+n-1}]" if n > 1 else f"s{b}"

_REG = re.compile(r'^(-?|\|?)(?:abs\()?([vsa])(?:(\d+)|\[(\d+):(\d+)\])\)?\|?$')

def parse_reg(tok):
    tok = tok.strip()
    if tok.startswith('-'): tok = tok[1:]
    if tok.startswith('abs(') and tok.endswith(')'): tok = tok[4:-1]
    m = re.match(r'^([vsa])(\d+)$', tok)
    if m: return (m.group(1), int(m.group(2)), int(m.group(2)))
    m = re.match(r'^([vsa])\[(\d+):(\d+)\]$', tok)
    if m: return (m.group(1), int(m.group(2)), int(m.group(3)))
    if tok in ('vcc',): return ('s', 106, 107)
    if tok == 'vcc_lo': return ('s', 106, 106)
    if tok == 'exec': return ('s', 126, 127)
    if tok == 'm0': return ('s', 124, 124)
    return None

def regset(r):
    if r is None: return set()
    k, a, b = r
    return {(k, i) for i in range(a, b + 1)}

TRANS = ('v_exp_f32', 'v_log_f32', 'v_rcp_f32', 'v_rsq_f32', 'v_sqrt_f32', 'v_sin_f32', 'v_cos_f32')

class Inst:
    __slots__ = ('text', 'mn', 'kind', 'reads', 'writes', 'nopn', 'comment', 'label', 'passes', 'srcC', 'wide_store')
    def __init__(self, text, comment=None):
        self.text = text.strip(); self.comment = comment; self.label = None
        self.reads = set(); self.writes = set(); self.nopn = 1; self.passes = 0; self.srcC = set(); self.wide_store = False
        t = self.text
        if t.endswith(':'):
            self.mn = t; self.kind = 'label'; self.label = t[:-1]; self.nopn = 0; return
        parts = t.split(None, 1)
        self.mn = parts[0]
        ops = []
        if len(parts) > 1:
            depth = 0; cur = ''
            for ch in parts[1]:
                if ch == '[' or ch == '(': depth += 1
                if ch == ']' or ch == ')': depth -= 1
                if ch == ',' and depth == 0:
                    ops.append(cur.strip()); cur = ''
                else: cur += ch
            if cur.strip(): ops.append(cur.strip())
        clean = []
        for o in ops:
            toks = o.split()
            clean.append(toks[0] if toks else '')
        mn = self.mn
        R = [parse_reg(o) for o in clean]
        if mn.startswith('v_mfma'):
            self.kind = 'mfma'
            self.writes |= regset(R[0])
            for r in R[1:4]: self.reads |= regset(r)
            self.srcC = regset(R[3]) if len(R) > 3 else set()
            if '16x16x32' in mn: self.passes = 4
            elif '32x32x16' in mn: self.passes = 8
            else: raise ValueError("unknown mfma passes: " + mn)
        elif mn.startswith('v_permlane') and 'swap' in mn:
            self.kind = 'valu'
            for r in R[:2]:
                self.reads |= regset(r); self.writes |= regset(r)
        elif mn.startswith('v_cmp') or mn.startswith('v_readfirstlane') or mn.startswith('v_readlane'):
            self.kind = 'valu'
            self.writes |= regset(R[0])
            for r in R[1:]: self.reads |= regset(r)
        elif mn.startswith('v_'):
            self.kind = 'trans' if mn.split('_e')[0] in TRANS or mn in TRANS else 'valu'
            self.writes |= regset(R[0])
            for r in R[1:]: self.reads |= regset(r)
            if mn.startswith('v_fmac') or mn.startswith('v_dot2c'): self.reads |= regset(R[0])
            if mn.startswith('v_add_co') or mn.startswith('v_addc_co') or mn.startswith('v_sub_co'):
                self.writes |= regset(R[1])
        elif mn.startswith('buffer_load') or mn.startswith('global_load'):
            self.kind = 'vmem_load'
            self.writes |= regset(R[0])
            for r in R[1:]: self.reads |= regset(r)
        elif mn.startswith('buffer_store') or mn.startswith('global_store') or mn.startswith('buffer_atomic') or mn.startswith('global_atomic'):
            self.kind = 'vmem_store'
            for r in R: self.reads |= regset(r)
            if 'x3' in mn or 'x4' in mn: self.wide_store = True
            if ' sc0' in t and 'atomic' in mn:
                self.kind = 'vmem_load'; self.writes |= regset(R[0])
        elif mn.startswith('ds_read') or mn.startswith('ds_bpermute') or mn.startswith('ds_swizzle'):
            self.kind = 'ds_load'
            self.writes |= regset(R[0])
            for r in R[1:]: self.reads |= regset(r)
        elif mn.startswith('ds_write') or mn.startswith('ds_add') or mn.startswith('ds_max'):
            self.kind = 'ds_store'
            for r in R: self.reads |= regset(r)
        elif mn.startswith('s_load') or mn.startswith('s_memtime'):
            self.kind = 'smem'
            self.writes |= regset(R[0])
            for r in R[1:]: self.reads |= regset(r)
        elif mn == 's_nop':
            self.kind = 'nop'; self.nopn = int(clean[0], 0) + 1
        elif mn == 's_waitcnt':
            self.kind = 'wait'
        elif mn.startswith('s_cmp') or mn.startswith('s_cbranch') or mn in ('s_branch', 's_barrier', 's_endpgm', 's_setprio', 's_sleep'):
            self.kind = 'salu'
            for r in R: self.reads |= regset(r)
        elif mn.startswith('s_'):
            self.kind = 'salu'
            self.writes |= regset(R[0])
            for r in R[1:]: self.reads |= regset(r)
        else:
            raise ValueError("unknown instruction: " + t)

    def __str__(self):
        if self.kind == 'label': return self.text
        return "    " + self.text + (f"    ; {self.comment}" if self.comment else "")

class Prog:
    def __init__(self):
        self.code = []
        self.trace = []
        self._record = True
    def emit(self, text, comment=None):
        i = Inst(text, comment); self.code.append(i)
        if self._record: self.trace.append(i)
        return i
    def __call__(self, text, comment=None): return self.emit(text, comment)
    def label(self, name): return self.emit(name + ":")
    def comment(self, c):
        i = Inst("s_nop 0"); i.text = "; " + c; i.kind = 'label'; i.nopn = 0; i.mn = ';'; i.label = None
        self.code.append(i); return i
    def nop(self, n):
        while n > 0:
            k = min(n, 16); self.emit(f"s_nop {k-1}"); n -= k
    def loop(self, body_fn, trips):
        start = len(self.code)
        tstart = len(self.trace)
        body_fn()
        body = self.trace[tstart:]
        for _ in range(trips - 1): self.trace.extend(body)
    def text(self):
        out = []
        for i in self.code:
            if i.kind == 'label' and i.mn == ';': out.append("    " + i.text)
            else: out.append(str(i))
        return "\n".join(out)

def verify(prog, name="", verbose=True, autopad=False):
    probs = []
    vm = []
    lg = []
    hist = []
    pos = 0
    pads = {}
    for idx, ins in enumerate(prog.trace):
        if ins.kind == 'label': continue
        if ins.kind == 'wait':
            m = re.search(r'vmcnt\((\d+)\)', ins.text)
            if m:
                n = int(m.group(1))
                while len(vm) > n: vm.pop(0)
            m = re.search(r'lgkmcnt\((\d+)\)', ins.text)
            if m:
                n = int(m.group(1))
                if any(k == 'smem' for k, _ in lg) and n != 0:
                    probs.append(f"{name}: counted lgkmcnt with SMEM outstanding at: {ins}")
                while len(lg) > n: lg.pop(0)
        else:
            touched = ins.reads | ins.writes
            for (li, dst) in vm:
                if dst & touched:
                    probs.append(f"{name}: missing vmcnt wait: '{ins.text}' touches {sorted(dst & touched)[:4]} still being loaded by '{li.text}'")
                    break
            for (k, dst) in lg:
                if dst & touched:
                    probs.append(f"{name}: missing lgkmcnt wait: '{ins.text}' touches {sorted(dst & touched)[:4]}")
                    break
        def need(req, why, prod):
            dist = pos - prod[1] - prod[0].nopn
            if dist < req:
                probs.append(f"{name}: hazard ({why}): need {req} have {dist}: '{prod[0].text}' -> '{ins.text}'")
        if ins.kind in ('valu', 'trans', 'mfma', 'vmem_load', 'vmem_store', 'ds_load', 'ds_store', 'salu'):
            for prod in reversed(hist):
                p = prod[0]
                if pos - prod[1] > 40: break
                if p.kind in ('valu', 'trans') and ins.kind == 'mfma' and (p.writes & ins.reads):
                    need(2, "VALU->MFMA read", prod)
                if p.kind == 'mfma':
                    ps = p.passes
                    raw_tab = {2: 5, 4: 8, 8: 12, 16: 20}
                    ovl_tab = {2: 4, 4: 6, 8: 10, 16: 18}
                    war_tab = {2: 1, 4: 3, 8: 7, 16: 15}
                    if ins.kind == 'mfma':
                        ab = ins.reads - ins.srcC
                        if p.writes & ab: need(raw_tab[ps], "MFMA D -> MFMA A/B", prod)
                        if p.writes & ins.srcC:
                            if p.writes == ins.srcC and ins.passes == ps:
                                if ps == 2: need(2, "MFMA D->SrcC same (2pass)", prod)
                            else: need(ovl_tab[ps], "MFMA D -> MFMA SrcC overlap", prod)
                    else:
                        if p.writes & (ins.reads | ins.writes): need(raw_tab[ps], "MFMA D -> VALU/VMEM/DS", prod)
                        if ins.kind in ('valu', 'trans') and (p.srcC & ins.writes): need(war_tab[ps], "MFMA SrcC WAR", prod)
                if p.kind == 'trans' and ins.kind in ('valu', 'mfma') and (p.writes & ins.reads):
                    need(1, "trans -> VALU", prod)
                if p.kind in ('valu', 'trans') and ins.mn.startswith('v_permlane') and (p.writes & ins.reads):
                    need(2, "VALU -> permlane", prod)
                if p.kind in ('valu', 'trans') and (ins.mn.startswith('v_readfirstlane') or ins.mn.startswith('v_readlane')) and (p.writes & ins.reads):
                    need(1, "VALU -> readlane", prod)
                swr = {r for r in p.writes if r[0] == 's'}
                if p.kind in ('valu', 'trans') and swr:
                    if ins.kind in ('vmem_load', 'vmem_store') and (swr & ins.reads): need(5, "VALU sgpr -> VMEM", prod)
                    if ins.kind in ('valu', 'trans') and (swr & ins.reads): need(2, "VALU sgpr -> VALU const", prod)
                if p.kind == 'vmem_store' and p.wide_store and ins.kind in ('valu', 'trans') and (p.reads & ins.writes):
                    need(2, "wide store data WAR", prod)
        if ins.kind == 'vmem_load': vm.append((ins, set(ins.writes)))
        elif ins.kind == 'vmem_store': vm.append((ins, set()))
        elif ins.kind == 'ds_load': lg.append(('ds', set(ins.writes)))
        elif ins.kind == 'ds_store': lg.append(('ds', set()))
        elif ins.kind == 'smem': lg.append(('smem', set(ins.writes)))
        if len(vm) > 63: probs.append(f"{name}: vmcnt overflow (>63 outstanding) at {ins.text}")
        if len(lg) > 15: probs.append(f"{name}: lgkmcnt overflow (>15 outstanding) at {ins.text}")
        hist.append((ins, pos))
        pos += ins.nopn
        if len(hist) > 64: hist.pop(0)
    return probs
```

```python
import math, sys
sys.path.insert(0, "dev")
from asmlib import Prog, verify, v, vr, s, sr

B, SQ, D, HQ, HKV, SK, DH = 8, 4, 512, 32, 8, 4096, 128
WS_Q   = 0
WS_PO  = 0x40000
WS_PML = WS_PO + 256 * 8192
WS_OP  = WS_PML + 256 * 128
WS_USED = 0x1000000
C1 = (DH ** -0.5) * math.log2(math.e)

def f32hex(x):
    import struct
    return "0x%08x" % struct.unpack("<I", struct.pack("<f", x))[0]

class VAlloc:
    def __init__(self, start=0): self.n = start
    def __call__(self, cnt=1, align=1):
        self.n = (self.n + align - 1) // align * align
        b = self.n; self.n += cnt; return b

def kernel_header(name):
    return f""".globl {name}
.p2align 8
.type {name},@function
{name}:"""

def kernel_desc(name, nvgpr, nsgpr, lds=0):
    acc = (nvgpr + 3) // 4 * 4
    return f""".p2align 6
.amdhsa_kernel {name}
  .amdhsa_next_free_vgpr {nvgpr}
  .amdhsa_next_free_sgpr {nsgpr}
  .amdhsa_accum_offset {acc}
  .amdhsa_group_segment_fixed_size 0
  .amdhsa_kernarg_size 64
  .amdhsa_user_sgpr_count 2
  .amdhsa_user_sgpr_kernarg_segment_ptr 1
  .amdhsa_system_sgpr_workgroup_id_x 1
.end_amdhsa_kernel"""

def gen_k2(name="attn_kernel", WPW=4, NS=2, nt=False):
    P = Prog()
    KPW = 1024 // WPW
    U = KPW // 32
    assert U % NS == 0
    CHUNK = KPW * 256
    NTs = " nt" if nt else ""
    NW = 8 * (2 * NS - 1) + 0
    NW = 8 + 16 * (NS - 1)
    sKV = 4
    sWS = 8
    SRD_K, SRD_V, SRD_W = 12, 16, 20
    sWave, sPre, sCnt, sC1, sSelE, sSelO, sQoff, sG, sT, sT2, sOut = 24, 25, 26, 27, 28, 29, 30, 31, 32, 33, 34
    NSGPR = 40
    va = VAlloc(1)
    vLane = va(); vC = va(); vGp = va(); t1 = va(); t2 = va(); t3 = va()
    vKoff = [va(), va()]; vVoff = [va(), va()]; vQoff = va()
    vM = va(2, 2); vL = vM + 1
    vMn = va(); vAlpha = va(); vMc = va()
    Q = [va(4, 4) for _ in range(4)]
    ST = [va(4, 4) for _ in range(2)]
    PB = va(4, 4)
    VT = [va(4, 4) for _ in range(2)]
    O = [va(4, 4) for _ in range(8)]
    K = [[[va(4, 4) for kk in range(4)] for t in range(2)] for X in range(NS)]
    V = [[va(4, 4) for j in range(8)] for X in range(NS)]
    NVGPR = va.n

    P(f"s_cmp_ge_u32 s2, 256")
    P(f"s_cbranch_scc1 {name}_end")
    P(f"s_load_dwordx4 s[4:7], s[0:1], 8", "k_cache, v_cache")
    P(f"s_load_dwordx2 s[8:9], s[0:1], 56", "d_ws")
    P(f"v_lshrrev_b32 {v(t1)}, 6, v0", "wave id")
    P(f"v_and_b32 {v(vLane)}, 63, v0")
    P(f"v_readfirstlane_b32 s{sWave}, {v(t1)}")
    P(f"v_and_b32 {v(vC)}, 15, {v(vLane)}", "m / c")
    P(f"v_lshrrev_b32 {v(vGp)}, 4, {v(vLane)}", "g")
    P(f"v_and_b32 {v(t1)}, 3, {v(vC)}")
    P(f"v_lshlrev_b32 {v(t1)}, 10, {v(t1)}")
    P(f"v_lshrrev_b32 {v(t2)}, 2, {v(vC)}")
    P(f"v_lshlrev_b32 {v(t2)}, 8, {v(t2)}")
    P(f"v_add_u32 {v(t1)}, {v(t1)}, {v(t2)}")
    P(f"v_lshlrev_b32 {v(t3)}, 4, {v(vGp)}")
    P(f"v_add_u32 {v(vKoff[0])}, {v(t1)}, {v(t3)}")
    P(f"v_add_u32 {v(vKoff[1])}, 4096, {v(vKoff[0])}")
    P(f"v_lshlrev_b32 {v(vVoff[0])}, 4, {v(vLane)}")
    P(f"v_add_u32 {v(vVoff[1])}, 4096, {v(vVoff[0])}")
    P(f"v_and_b32 {v(t1)}, 3, {v(vC)}")
    P(f"v_lshlrev_b32 {v(t1)}, 13, {v(t1)}")
    P(f"v_add_u32 {v(t1)}, {v(t1)}, {v(t2)}")
    P(f"v_add_u32 {v(vQoff)}, {v(t1)}, {v(t3)}")
    P(f"s_lshr_b32 s{sG}, s2, 2", "group")
    P(f"s_and_b32 s{sT2}, s2, 3", "split")
    P(f"s_lshl_b32 s{sT}, s{sG}, 20")
    P(f"s_lshl_b32 s{sT2}, s{sT2}, 18")
    P(f"s_add_u32 s{sT}, s{sT}, s{sT2}")
    P(f"s_waitcnt lgkmcnt(0)")
    P(f"s_lshl_b32 s{sT2}, s{sWave}, {int(math.log2(CHUNK))}")
    P(f"s_add_u32 s{sT}, s{sT}, s{sT2}", "byte offset of this wave's chunk")
    for (srd, lo) in ((SRD_K, 4), (SRD_V, 6)):
        P(f"s_add_u32 s{srd}, s{lo}, s{sT}")
        P(f"s_addc_u32 s{srd+1}, s{lo+1}, 0")
        P(f"s_mov_b32 s{srd+2}, {CHUNK}")
        P(f"s_mov_b32 s{srd+3}, 0x00020000")
    P(f"s_mov_b32 s{SRD_W}, s8")
    P(f"s_mov_b32 s{SRD_W+1}, s9")
    P(f"s_mov_b32 s{SRD_W+2}, {WS_USED}")
    P(f"s_mov_b32 s{SRD_W+3}, 0x00020000")
    P(f"s_lshr_b32 s{sT}, s{sG}, 3")
    P(f"s_lshl_b32 s{sT}, s{sT}, 15")
    P(f"s_and_b32 s{sT2}, s{sG}, 7")
    P(f"s_lshl_b32 s{sT2}, s{sT2}, 10")
    P(f"s_add_u32 s{sQoff}, s{sT}, s{sT2}", "q soffset = b*32768 + hkv*1024")
    for kk in range(4):
        P(f"buffer_load_dwordx4 {vr(Q[kk],4)}, {v(vQoff)}, s[{SRD_W}:{SRD_W+3}], s{sQoff} offen offset:{kk*64}", f"Q kk={kk}")
    def loadK(X, soff):
        for t in range(2):
            for kk in range(4):
                P(f"buffer_load_dwordx4 {vr(K[X][t][kk],4)}, {v(vKoff[t])}, s[{SRD_K}:{SRD_K+3}], {soff} offen offset:{kk*64}{NTs}")
    def loadV(X, soff):
        for j in range(8):
            P(f"buffer_load_dwordx4 {vr(V[X][j],4)}, {v(vVoff[j>>2])}, s[{SRD_V}:{SRD_V+3}], {soff} offen offset:{(j&3)*1024}{NTs}")
    P(f"s_mov_b32 s{sPre}, 0")
    P(f"s_mov_b32 s{sC1}, {f32hex(C1)}")
    P(f"s_mov_b32 s{sSelE}, 0x05040100")
    P(f"s_mov_b32 s{sSelO}, 0x07060302")
    for X in range(NS):
        loadK(X, f"s{sPre}"); loadV(X, f"s{sPre}")
        P(f"s_add_u32 s{sPre}, s{sPre}, 8192")
    P(f"v_mov_b32 {v(vM)}, 0xff800000", "m = -inf")
    P(f"v_mov_b32 {v(vL)}, 0")
    for i in range(8):
        for r in range(4):
            P(f"v_mov_b32 {v(O[i]+r)}, 0")
    P(f"s_mov_b32 s{sCnt}, {U // NS}")

    def unit(X):
        P.comment(f"---- unit, stage {X}")
        P(f"s_waitcnt vmcnt({NW})", "K(u) (and older) landed")
        for kk in range(4):
            for t in range(2):
                C = "0" if kk == 0 else vr(ST[t], 4)
                P(f"v_mfma_f32_16x16x32_bf16 {vr(ST[t],4)}, {vr(K[X][t][kk],4)}, {vr(Q[kk],4)}, {C}")
        loadK(X, f"s{sPre}")
        a, b = ST[0], ST[1]
        P(f"v_max3_f32 {v(t1)}, {v(a)}, {v(a+1)}, {v(a+2)}")
        P(f"v_max3_f32 {v(t1)}, {v(t1)}, {v(a+3)}, {v(b)}")
        P(f"v_max3_f32 {v(t1)}, {v(t1)}, {v(b+1)}, {v(b+2)}")
        P(f"v_max_f32 {v(t1)}, {v(t1)}, {v(b+3)}")
        P(f"v_mov_b32 {v(t2)}, {v(t1)}")
        P.nop(2)
        P(f"v_permlane32_swap_b32 {v(t1)}, {v(t2)}")
        P(f"v_max_f32 {v(t1)}, {v(t1)}, {v(t2)}")
        P(f"v_mov_b32 {v(t2)}, {v(t1)}")
        P.nop(2)
        P(f"v_permlane16_swap_b32 {v(t1)}, {v(t2)}")
        P(f"v_max_f32 {v(t1)}, {v(t1)}, {v(t2)}")
        P(f"v_max_f32 {v(vMn)}, {v(vM)}, {v(t1)}", "m_new")
        P(f"v_sub_f32 {v(t2)}, {v(vM)}, {v(vMn)}")
        P(f"v_mul_f32 {v(t2)}, s{sC1}, {v(t2)}")
        P(f"v_exp_f32 {v(vAlpha)}, {v(t2)}")
        P(f"v_mul_f32 {v(vMc)}, s{sC1}, {v(vMn)}")
        P(f"v_mov_b32 {v(vM)}, {v(vMn)}")
        sreg = [a, a+1, a+2, a+3, b, b+1, b+2, b+3]
        for k in sreg:
            P(f"v_fma_f32 {v(k)}, {v(k)}, s{sC1}, -{v(vMc)}")
        for k in sreg:
            P(f"v_exp_f32 {v(k)}, {v(k)}")
        for i in range(8):
            for r in range(4):
                P(f"v_mul_f32 {v(O[i]+r)}, {v(O[i]+r)}, {v(vAlpha)}")
        P(f"v_add_f32 {v(t1)}, {v(a)}, {v(a+1)}")
        P(f"v_add_f32 {v(t2)}, {v(a+2)}, {v(a+3)}")
        P(f"v_add_f32 {v(t3)}, {v(b)}, {v(b+1)}")
        P(f"v_add_f32 {v(t1)}, {v(t1)}, {v(t2)}")
        P(f"v_add_f32 {v(t2)}, {v(b+2)}, {v(b+3)}")
        P(f"v_add_f32 {v(t3)}, {v(t3)}, {v(t2)}")
        P(f"v_add_f32 {v(t1)}, {v(t1)}, {v(t3)}")
        P(f"v_fma_f32 {v(vL)}, {v(vL)}, {v(vAlpha)}, {v(t1)}", "l = l*alpha + sum p")
        P(f"v_cvt_pk_bf16_f32 {v(PB)}, {v(a)}, {v(a+1)}")
        P(f"v_cvt_pk_bf16_f32 {v(PB+1)}, {v(a+2)}, {v(a+3)}")
        P(f"v_cvt_pk_bf16_f32 {v(PB+2)}, {v(b)}, {v(b+1)}")
        P(f"v_cvt_pk_bf16_f32 {v(PB+3)}, {v(b+2)}, {v(b+3)}")
        P(f"s_waitcnt vmcnt({NW})", "V(u) landed")
        def perm(i):
            sel = sSelE if (i & 1) == 0 else sSelO
            for p in range(4):
                P(f"v_perm_b32 {v(VT[i%2]+p)}, {v(V[X][2*p+1]+(i>>1))}, {v(V[X][2*p]+(i>>1))}, s{sel}")
        def pv(i):
            P(f"v_mfma_f32_16x16x32_bf16 {vr(O[i],4)}, {vr(VT[i%2],4)}, {vr(PB,4)}, {vr(O[i],4)}")
        perm(0)
        for i in range(7):
            perm(i + 1)
            pv(i)
        loadV(X, f"s{sPre}")
        pv(7)
        P(f"s_add_u32 s{sPre}, s{sPre}, 8192")

    P.label(f"{name}_loop")
    def body():
        for X in range(NS): unit(X)
        P(f"s_sub_u32 s{sCnt}, s{sCnt}, 1")
        P(f"s_cmp_lg_u32 s{sCnt}, 0")
        P(f"s_cbranch_scc1 {name}_loop")
    P.loop(body, U // NS)

    P("s_waitcnt vmcnt(0)", "trailing (out-of-range, zero-returning) prefetches must land before their regs are reused")
    P(f"v_mov_b32 {v(t2)}, {v(vL)}")
    P.nop(2)
    P(f"v_permlane32_swap_b32 {v(vL)}, {v(t2)}")
    P(f"v_add_f32 {v(vL)}, {v(vL)}, {v(t2)}")
    P(f"v_mov_b32 {v(t2)}, {v(vL)}")
    P.nop(2)
    P(f"v_permlane16_swap_b32 {v(vL)}, {v(t2)}")
    P(f"v_add_f32 {v(vL)}, {v(vL)}, {v(t2)}")
    LDS_ML = WPW * 8192
    P(f"s_lshl_b32 s{sT}, s{sWave}, 13")
    P(f"v_lshlrev_b32 {v(t1)}, 4, {v(vLane)}")
    P(f"v_add_u32 {v(t3)}, s{sT}, {v(t1)}", "lds O write addr")
    for i in range(8):
        P(f"ds_write_b128 {v(t3)}, {vr(O[i],4)} offset:{i*1024}")
    P(f"s_lshl_b32 s{sT}, s{sWave}, 7")
    P(f"s_add_u32 s{sT}, s{sT}, {LDS_ML}")
    P(f"v_lshlrev_b32 {v(t2)}, 3, {v(vC)}")
    P(f"v_add_u32 {v(vMn)}, s{sT}, {v(t2)}")
    P(f"ds_write_b64 {v(vMn)}, {vr(vM,2)}")
    P(f"s_waitcnt lgkmcnt(0)")
    P(f"s_barrier")
    scr = K[0][0][0]
    MLr = [scr + 2*w for w in range(WPW)]
    P(f"v_add_u32 {v(vMn)}, {LDS_ML}, {v(t2)}", "lds ML read addr (c*8)")
    for w in range(WPW):
        P(f"ds_read_b64 {vr(MLr[w],2)}, {v(vMn)} offset:{w*128}")
    SPW = 8 // WPW
    P(f"s_lshl_b32 s{sT}, s{sWave}, {int(math.log2(SPW*1024))}")
    P(f"v_add_u32 {v(t3)}, s{sT}, {v(t1)}", "lds O read addr = lane*16 + wave*SPW*1024")
    Rb = K[0][0][0] + 2 * WPW
    Rb = (Rb + 3) // 4 * 4
    Rr = [[Rb + (w * SPW + e) * 4 for e in range(SPW)] for w in range(WPW)]
    assert Rb + WPW * SPW * 4 <= K[0][0][0] + 64 * NS
    if WPW + WPW * SPW > 15:
        P(f"s_waitcnt lgkmcnt(0)")
    for w in range(WPW):
        for e in range(SPW):
            P(f"ds_read_b128 {vr(Rr[w][e],4)}, {v(t3)} offset:{w*8192 + e*1024}")
    if WPW + WPW * SPW <= 15:
        P(f"s_waitcnt lgkmcnt({WPW*SPW})")
    P(f"v_max_f32 {v(vMn)}, {v(MLr[0])}, {v(MLr[1])}")
    for w in range(2, WPW):
        P(f"v_max_f32 {v(vMn)}, {v(vMn)}, {v(MLr[w])}")
    sc = ST[0]
    scs = [ST[0] + w if w < 4 else ST[1] + (w - 4) for w in range(WPW)]
    for w in range(WPW):
        P(f"v_sub_f32 {v(scs[w])}, {v(MLr[w])}, {v(vMn)}")
    for w in range(WPW):
        P(f"v_mul_f32 {v(scs[w])}, s{sC1}, {v(scs[w])}")
    for w in range(WPW):
        P(f"v_exp_f32 {v(scs[w])}, {v(scs[w])}")
    P.nop(1)
    P(f"v_mul_f32 {v(vAlpha)}, {v(scs[0])}, {v(MLr[0]+1)}")
    for w in range(1, WPW):
        P(f"v_fma_f32 {v(vAlpha)}, {v(scs[w])}, {v(MLr[w]+1)}, {v(vAlpha)}", "L* = sum sc_w*L_w")
    P(f"s_waitcnt lgkmcnt(0)")
    acc = [O[e] for e in range(SPW)]
    for e in range(SPW):
        for r in range(4):
            P(f"v_mul_f32 {v(acc[e]+r)}, {v(scs[0])}, {v(Rr[0][e]+r)}")
        for w in range(1, WPW):
            for r in range(4):
                P(f"v_fma_f32 {v(acc[e]+r)}, {v(scs[w])}, {v(Rr[w][e]+r)}, {v(acc[e]+r)}")
    P(f"s_lshl_b32 s{sOut}, s2, 13")
    P(f"s_add_u32 s{sOut}, s{sOut}, {WS_PO}")
    for e in range(SPW):
        P(f"buffer_store_dwordx4 {vr(acc[e],4)}, {v(t3)}, s[{SRD_W}:{SRD_W+3}], s{sOut} offen offset:{e*1024}")
    P(f"s_cmp_lg_u32 s{sWave}, 0")
    P(f"s_cbranch_scc1 {name}_end")
    P(f"v_mov_b32 {v(vM)}, {v(vMn)}")
    P(f"v_mov_b32 {v(vL)}, {v(vAlpha)}")
    P(f"s_lshl_b32 s{sOut}, s2, 7")
    P(f"s_add_u32 s{sOut}, s{sOut}, {WS_PML}")
    P(f"buffer_store_dwordx2 {vr(vM,2)}, {v(t2)}, s[{SRD_W}:{SRD_W+3}], s{sOut} offen")
    P.label(f"{name}_end")
    P("s_endpgm")
    probs = verify(P, name)
    lds = WPW * 8192 + WPW * 128
    return P, NVGPR, NSGPR, lds, probs


def gen_k1(name="qproj_kernel", nt=True):
    P = Prog()
    NTs = " nt" if nt else ""
    SRD_X, SRD_W, SRD_S = 12, 16, 20
    sWave, sT, sT2, sSelE, sSelO, sWoff, sXoff = 24, 25, 26, 27, 28, 29, 30
    NSGPR = 40
    va = VAlloc(1)
    vLane = va(); vC = va(); vGp = va(); t1 = va(); t2 = va(); t3 = va()
    vWoff = [va() for j in range(8)]
    vXoff = [va(), va()]
    VT = [va(4, 4) for _ in range(2)]
    ACC = [[va(4, 4) for i in range(8)] for mt in range(2)]
    XA = [[va(4, 4) for mt in range(2)] for ku in range(4)]
    W = [[va(4, 4) for j in range(8)] for ku in range(4)]
    NVGPR = va.n
    P(f"s_cmp_ge_u32 s2, 32")
    P(f"s_cbranch_scc1 {name}_end")
    P(f"s_load_dwordx2 s[4:5], s[0:1], 0", "x")
    P(f"s_load_dwordx2 s[6:7], s[0:1], 24", "wq")
    P(f"s_load_dwordx2 s[8:9], s[0:1], 56", "ws")
    P(f"v_lshrrev_b32 {v(t1)}, 6, v0")
    P(f"v_and_b32 {v(vLane)}, 63, v0")
    P(f"v_readfirstlane_b32 s{sWave}, {v(t1)}")
    P(f"v_and_b32 {v(vC)}, 15, {v(vLane)}")
    P(f"v_lshrrev_b32 {v(vGp)}, 4, {v(vLane)}")
    P(f"v_lshlrev_b32 {v(t1)}, 16, {v(vGp)}")
    P(f"v_lshlrev_b32 {v(t2)}, 4, {v(vC)}")
    P(f"v_add_u32 {v(vWoff[0])}, {v(t1)}, {v(t2)}")
    for j in range(1, 8):
        P(f"v_add_u32 {v(vWoff[j])}, {j*8192}, {v(vWoff[0])}")
    P(f"v_lshlrev_b32 {v(t1)}, 10, {v(vC)}")
    P(f"v_lshlrev_b32 {v(t2)}, 4, {v(vGp)}")
    P(f"v_add_u32 {v(vXoff[0])}, {v(t1)}, {v(t2)}")
    P(f"v_add_u32 {v(vXoff[1])}, 16384, {v(vXoff[0])}")
    P(f"s_waitcnt lgkmcnt(0)")
    for (srd, lo, nb) in ((SRD_X, 4, 32768), (SRD_W, 6, 4194304), (SRD_S, 8, WS_USED)):
        P(f"s_mov_b32 s{srd}, s{lo}")
        P(f"s_mov_b32 s{srd+1}, s{lo+1}")
        P(f"s_mov_b32 s{srd+2}, {nb}")
        P(f"s_mov_b32 s{srd+3}, 0x00020000")
    P(f"s_lshl_b32 s{sT}, s2, 8")
    P(f"s_lshl_b32 s{sT2}, s{sWave}, 20")
    P(f"s_add_u32 s{sWoff}, s{sT}, s{sT2}")
    P(f"s_lshl_b32 s{sXoff}, s{sWave}, 8")
    P(f"s_mov_b32 s{sSelE}, 0x05040100")
    P(f"s_mov_b32 s{sSelO}, 0x07060302")
    for ku in range(4):
        for mt in range(2):
            P(f"buffer_load_dwordx4 {vr(XA[ku][mt],4)}, {v(vXoff[mt])}, s[{SRD_X}:{SRD_X+3}], s{sXoff} offen offset:{ku*64}")
    for ku in range(4):
        if ku: P(f"s_add_u32 s{sWoff}, s{sWoff}, 262144")
        for j in range(8):
            P(f"buffer_load_dwordx4 {vr(W[ku][j],4)}, {v(vWoff[j])}, s[{SRD_W}:{SRD_W+3}], s{sWoff} offen{NTs}")
    for ku in range(4):
        P(f"s_waitcnt vmcnt({(3-ku)*8})")
        def perm(i):
            sel = sSelE if (i & 1) == 0 else sSelO
            for p in range(4):
                P(f"v_perm_b32 {v(VT[i%2]+p)}, {v(W[ku][2*p+1]+(i>>1))}, {v(W[ku][2*p]+(i>>1))}, s{sel}")
        def mm(i):
            for mt in range(2):
                C = "0" if ku == 0 else vr(ACC[mt][i], 4)
                P(f"v_mfma_f32_16x16x32_bf16 {vr(ACC[mt][i],4)}, {vr(XA[ku][mt],4)}, {vr(VT[i%2],4)}, {C}")
        perm(0)
        for i in range(8):
            if i + 1 < 8: perm(i + 1)
            else: P.nop(1)
            mm(i)
    P.nop(8)
    P(f"s_lshl_b32 s{sT}, s{sWave}, 14")
    P(f"v_lshlrev_b32 {v(t1)}, 4, {v(vLane)}")
    P(f"v_add_u32 {v(t3)}, s{sT}, {v(t1)}")
    for mt in range(2):
        for i in range(8):
            P(f"ds_write_b128 {v(t3)}, {vr(ACC[mt][i],4)} offset:{(mt*8+i)*1024}")
        if mt == 0: P("s_waitcnt lgkmcnt(4)")
    P(f"s_waitcnt lgkmcnt(0)")
    P(f"s_barrier")
    P(f"s_lshr_b32 s{sT}, s{sWave}, 1")
    P(f"s_lshl_b32 s{sT}, s{sT}, 13", "mt*8192")
    P(f"s_and_b32 s{sT2}, s{sWave}, 1")
    P(f"s_lshl_b32 s{sT2}, s{sT2}, 3")
    P(f"s_add_u32 s{sT}, s{sT}, s{sT2}")
    P(f"v_add_u32 {v(t3)}, s{sT}, {v(t1)}")
    Rb = W[0][0]
    R = [[Rb + (w * 8 + i) * 2 for i in range(8)] for w in range(4)]
    for w in range(4):
        for i in range(8):
            P(f"ds_read_b64 {vr(R[w][i],2)}, {v(t3)} offset:{w*16384 + i*1024}")
        if w % 2 == 1 or True:
            P(f"s_waitcnt lgkmcnt(0)")
    for w in range(1, 4):
        for i in range(8):
            for rr in range(2):
                P(f"v_add_f32 {v(R[0][i]+rr)}, {v(R[0][i]+rr)}, {v(R[w][i]+rr)}")
    OUTR = [VT[0], VT[1]]
    for rr in range(2):
        for p in range(4):
            P(f"v_cvt_pk_bf16_f32 {v(OUTR[rr]+p)}, {v(R[0][2*p]+rr)}, {v(R[0][2*p+1]+rr)}")
    P(f"v_lshlrev_b32 {v(t1)}, 15, {v(vGp)}")
    P(f"v_lshlrev_b32 {v(t2)}, 4, {v(vC)}")
    P(f"v_add_u32 {v(t1)}, {v(t1)}, {v(t2)}")
    P(f"v_add_u32 {v(t2)}, 8192, {v(t1)}")
    P(f"s_lshr_b32 s{sT}, s{sWave}, 1")
    P(f"s_lshl_b32 s{sT}, s{sT}, 17", "mt*16*8192")
    P(f"s_and_b32 s{sT2}, s{sWave}, 1")
    P(f"s_lshl_b32 s{sT2}, s{sT2}, 14", "rp*2*8192")
    P(f"s_add_u32 s{sT}, s{sT}, s{sT2}")
    P(f"s_lshl_b32 s{sT2}, s2, 8")
    P(f"s_add_u32 s{sT}, s{sT}, s{sT2}")
    if WS_Q: P(f"s_add_u32 s{sT}, s{sT}, {WS_Q}")
    P(f"buffer_store_dwordx4 {vr(OUTR[0],4)}, {v(t1)}, s[{SRD_S}:{SRD_S+3}], s{sT} offen")
    P(f"buffer_store_dwordx4 {vr(OUTR[1],4)}, {v(t2)}, s[{SRD_S}:{SRD_S+3}], s{sT} offen")
    P.label(f"{name}_end")
    P("s_endpgm")
    probs = verify(P, name)
    return P, NVGPR, NSGPR, 65536, probs

def gen_k3(name="oproj_kernel", nt=True):
    P = Prog()
    NTs = " nt" if nt else ""
    SRD_O, SRD_S = 12, 16
    sWave, sT, sT2, sSelE, sSelO, sWo, sML, sC1 = 24, 25, 26, 27, 28, 29, 30, 31
    sPO = [32, 33, 34, 35]
    sH, sHH, sHKV = 36, 37, 38
    NSGPR = 44
    va = VAlloc(1)
    vLane = va(); vC = va(); vGp = va(); t1 = va(); t2 = va(); t3 = va()
    vWo = [va() for j in range(4)]
    vPO = [va(), va()]; vML = [va(), va()]
    VT = [va(4, 4) for _ in range(2)]
    A = [va(4, 4) for mt in range(2)]
    F = [va() for sg in range(4)]; vMx = va(); vLs = va()
    ACC = [[va(4, 4) for i in range(8)] for mt in range(2)]
    W = [va(4, 4) for j in range(8)]
    PO = [[[va(4, 4) for e in range(2)] for sg in range(4)] for mt in range(2)]
    ML = [[va(2, 2) for sg in range(4)] for mt in range(2)]
    NVGPR = va.n
    P(f"s_cmp_ge_u32 s2, 128")
    P(f"s_cbranch_scc1 {name}_end")
    P(f"s_load_dwordx2 s[4:5], s[0:1], 32", "wo")
    P(f"s_load_dwordx2 s[8:9], s[0:1], 56", "ws")
    P(f"v_lshrrev_b32 {v(t1)}, 6, v0")
    P(f"v_and_b32 {v(vLane)}, 63, v0")
    P(f"v_readfirstlane_b32 s{sWave}, {v(t1)}")
    P(f"v_and_b32 {v(vC)}, 15, {v(vLane)}")
    P(f"v_lshrrev_b32 {v(vGp)}, 4, {v(vLane)}")
    P(f"v_lshlrev_b32 {v(t1)}, 11, {v(vGp)}")
    P(f"v_lshlrev_b32 {v(t2)}, 4, {v(vC)}")
    P(f"v_add_u32 {v(vWo[0])}, {v(t1)}, {v(t2)}")
    for j in range(1, 4):
        P(f"v_add_u32 {v(vWo[j])}, {j*8192}, {v(vWo[0])}")
    P(f"v_lshrrev_b32 {v(t2)}, 2, {v(vC)}")
    P(f"v_lshlrev_b32 {v(t2)}, 18, {v(t2)}")
    P(f"v_add_u32 {v(t2)}, {v(t2)}, {v(t1)}")
    P(f"v_and_b32 {v(t3)}, 3, {v(vC)}")
    P(f"v_lshlrev_b32 {v(t3)}, 4, {v(t3)}")
    P(f"v_add_u32 {v(vPO[0])}, {v(t2)}, {v(t3)}")
    P(f"v_add_u32 {v(vPO[1])}, 0x100000, {v(vPO[0])}")
    P(f"v_lshrrev_b32 {v(t2)}, 2, {v(vC)}")
    P(f"v_lshlrev_b32 {v(t2)}, 12, {v(t2)}")
    P(f"v_lshrrev_b32 {v(t3)}, 1, {v(t3)}")
    P(f"v_add_u32 {v(vML[0])}, {v(t2)}, {v(t3)}")
    P(f"v_add_u32 {v(vML[1])}, 16384, {v(vML[0])}")
    P(f"s_lshr_b32 s{sH}, s2, 2")
    P(f"s_and_b32 s{sHH}, s{sH}, 3")
    P(f"s_lshr_b32 s{sHKV}, s{sH}, 2")
    P(f"s_waitcnt lgkmcnt(0)")
    for (srd, lo, nb) in ((SRD_O, 4, 4194304), (SRD_S, 8, WS_USED)):
        P(f"s_mov_b32 s{srd}, s{lo}")
        P(f"s_mov_b32 s{srd+1}, s{lo+1}")
        P(f"s_mov_b32 s{srd+2}, {nb}")
        P(f"s_mov_b32 s{srd+3}, 0x00020000")
    P(f"s_lshl_b32 s{sT}, s{sHKV}, 9")
    P(f"s_lshl_b32 s{sT2}, s{sHH}, 5")
    P(f"s_add_u32 s{sML}, s{sT}, s{sT2}")
    P(f"s_add_u32 s{sML}, s{sML}, {WS_PML}")
    for mt in range(2):
        for sg in range(4):
            P(f"buffer_load_dwordx2 {vr(ML[mt][sg],2)}, {v(vML[mt])}, s[{SRD_S}:{SRD_S+3}], s{sML} offen offset:{sg*128}")
    P(f"s_lshl_b32 s{sT}, s{sHKV}, 15")
    P(f"s_lshl_b32 s{sT2}, s{sWave}, 8")
    P(f"s_add_u32 s{sT}, s{sT}, s{sT2}")
    P(f"s_lshl_b32 s{sT2}, s{sHH}, 6")
    P(f"s_add_u32 s{sT}, s{sT}, s{sT2}")
    for sg in range(4):
        P(f"s_add_u32 s{sPO[sg]}, s{sT}, {WS_PO + sg*8192}")
    for mt in range(2):
        for sg in range(4):
            for e in range(2):
                P(f"buffer_load_dwordx4 {vr(PO[mt][sg][e],4)}, {v(vPO[mt])}, s[{SRD_S}:{SRD_S+3}], s{sPO[sg]} offen offset:{e*1024}")
    P(f"s_lshl_b32 s{sT}, s{sH}, 17")
    P(f"s_lshl_b32 s{sT2}, s{sWave}, 15")
    P(f"s_add_u32 s{sWo}, s{sT}, s{sT2}")
    P(f"s_and_b32 s{sT2}, s2, 3")
    P(f"s_lshl_b32 s{sT2}, s{sT2}, 8")
    P(f"s_add_u32 s{sWo}, s{sWo}, s{sT2}")
    for j in range(8):
        P(f"buffer_load_dwordx4 {vr(W[j],4)}, {v(vWo[j&3])}, s[{SRD_O}:{SRD_O+3}], s{sWo} offen offset:{(j>>2)*1024}{NTs}")
    P(f"s_mov_b32 s{sC1}, {f32hex(C1)}")
    P(f"s_mov_b32 s{sSelE}, 0x05040100")
    P(f"s_mov_b32 s{sSelO}, 0x07060302")
    P(f"s_waitcnt vmcnt(24)", "ML landed")
    for mt in range(2):
        M_ = [ML[mt][sg] for sg in range(4)]
        P(f"v_max_f32 {v(vMx)}, {v(M_[0])}, {v(M_[1])}")
        P(f"v_max3_f32 {v(vMx)}, {v(vMx)}, {v(M_[2])}, {v(M_[3])}")
        for sg in range(4):
            P(f"v_sub_f32 {v(F[sg])}, {v(M_[sg])}, {v(vMx)}")
        for sg in range(4):
            P(f"v_mul_f32 {v(F[sg])}, s{sC1}, {v(F[sg])}")
        for sg in range(4):
            P(f"v_exp_f32 {v(F[sg])}, {v(F[sg])}")
        P.nop(1)
        P(f"v_mul_f32 {v(vLs)}, {v(F[0])}, {v(M_[0]+1)}")
        for sg in range(1, 4):
            P(f"v_fma_f32 {v(vLs)}, {v(F[sg])}, {v(M_[sg]+1)}, {v(vLs)}")
        P(f"v_rcp_f32 {v(vLs)}, {v(vLs)}")
        P.nop(1)
        for sg in range(4):
            P(f"v_mul_f32 {v(F[sg])}, {v(F[sg])}, {v(vLs)}")
        P(f"s_waitcnt vmcnt({16 if mt == 0 else 8})", "partial O of this M tile landed")
        for e in range(2):
            for r in range(4):
                P(f"v_mul_f32 {v(PO[mt][0][e]+r)}, {v(F[0])}, {v(PO[mt][0][e]+r)}")
            for sg in range(1, 4):
                for r in range(4):
                    P(f"v_fma_f32 {v(PO[mt][0][e]+r)}, {v(F[sg])}, {v(PO[mt][sg][e]+r)}, {v(PO[mt][0][e]+r)}")
        for e in range(2):
            for h2 in range(2):
                P(f"v_cvt_pk_bf16_f32 {v(A[mt]+2*e+h2)}, {v(PO[mt][0][e]+2*h2)}, {v(PO[mt][0][e]+2*h2+1)}")
    P(f"s_waitcnt vmcnt(0)", "wo tile landed")
    def perm(i):
        sel = sSelE if (i & 1) == 0 else sSelO
        for p in range(4):
            P(f"v_perm_b32 {v(VT[i%2]+p)}, {v(W[2*p+1]+(i>>1))}, {v(W[2*p]+(i>>1))}, s{sel}")
    def mm(i):
        for mt in range(2):
            P(f"v_mfma_f32_16x16x32_bf16 {vr(ACC[mt][i],4)}, {vr(A[mt],4)}, {vr(VT[i%2],4)}, 0")
    perm(0)
    for i in range(8):
        if i + 1 < 8: perm(i + 1)
        else: P.nop(1)
        mm(i)
    P.nop(8)
    P(f"s_lshl_b32 s{sT}, s{sWave}, 14")
    P(f"v_lshlrev_b32 {v(t1)}, 4, {v(vLane)}")
    P(f"v_add_u32 {v(t3)}, s{sT}, {v(t1)}")
    for mt in range(2):
        for i in range(8):
            P(f"ds_write_b128 {v(t3)}, {vr(ACC[mt][i],4)} offset:{(mt*8+i)*1024}")
        if mt == 0: P("s_waitcnt lgkmcnt(4)")
    P(f"s_waitcnt lgkmcnt(0)")
    P(f"s_barrier")
    P(f"s_lshr_b32 s{sT}, s{sWave}, 1")
    P(f"s_lshl_b32 s{sT}, s{sT}, 13", "mt*8192")
    P(f"s_and_b32 s{sT2}, s{sWave}, 1")
    P(f"s_lshl_b32 s{sT2}, s{sT2}, 3")
    P(f"s_add_u32 s{sT}, s{sT}, s{sT2}")
    P(f"v_add_u32 {v(t3)}, s{sT}, {v(t1)}")
    Rb = PO[0][0][0]
    R = [[Rb + (w * 8 + i) * 2 for i in range(8)] for w in range(4)]
    for w in range(4):
        for i in range(8):
            P(f"ds_read_b64 {vr(R[w][i],2)}, {v(t3)} offset:{w*16384 + i*1024}")
        P(f"s_waitcnt lgkmcnt(0)")
    for w in range(1, 4):
        for i in range(8):
            for rr in range(2):
                P(f"v_add_f32 {v(R[0][i]+rr)}, {v(R[0][i]+rr)}, {v(R[w][i]+rr)}")
    OUT = [ACC[0][0], ACC[0][2]]
    assert ACC[0][1] == ACC[0][0] + 4 and ACC[0][3] == ACC[0][2] + 4
    for rr in range(2):
        for i in range(8):
            P(f"v_mov_b32 {v(OUT[rr]+i)}, {v(R[0][i]+rr)}")
    P(f"v_lshlrev_b32 {v(t1)}, 13, {v(vGp)}", "g*4*2048")
    P(f"v_lshlrev_b32 {v(t2)}, 5, {v(vC)}")
    P(f"v_add_u32 {v(t1)}, {v(t1)}, {v(t2)}")
    P(f"s_lshr_b32 s{sT}, s{sWave}, 1")
    P(f"s_lshl_b32 s{sT}, s{sT}, 15", "mt*16*2048")
    P(f"s_and_b32 s{sT2}, s{sWave}, 1")
    P(f"s_lshl_b32 s{sT2}, s{sT2}, 12", "rp*2*2048")
    P(f"s_add_u32 s{sT}, s{sT}, s{sT2}")
    P(f"s_lshl_b32 s{sT2}, s{sH}, 16")
    P(f"s_add_u32 s{sT}, s{sT}, s{sT2}")
    P(f"s_and_b32 s{sT2}, s2, 3")
    P(f"s_lshl_b32 s{sT2}, s{sT2}, 9", "cb*128*4")
    P(f"s_add_u32 s{sT}, s{sT}, s{sT2}")
    P(f"s_add_u32 s{sT}, s{sT}, {WS_OP}")
    for rr in range(2):
        for hlf in range(2):
            P(f"buffer_store_dwordx4 {vr(OUT[rr]+4*hlf,4)}, {v(t1)}, s[{SRD_S}:{SRD_S+3}], s{sT} offen offset:{rr*2048 + hlf*16}")
    P.label(f"{name}_end")
    P("s_endpgm")
    probs = verify(P, name)
    return P, NVGPR, NSGPR, 65536, probs

def gen_k4(name="oreduce_kernel"):
    P = Prog()
    SRD_S, SRD_O = 12, 16
    va = VAlloc(1)
    t1 = va(); t2 = va()
    R = [va(4, 4) for h in range(32)]
    OUTR = va(2, 2)
    NVGPR = va.n
    P(f"s_cmp_ge_u32 s2, 64")
    P(f"s_cbranch_scc1 {name}_end")
    P(f"s_load_dwordx4 s[4:7], s[0:1], 40", "d_out, d_debug")
    P(f"s_load_dwordx2 s[8:9], s[0:1], 56", "ws")
    P(f"s_lshl_b32 s3, s2, 6")
    P(f"v_add_u32 {v(t1)}, s3, v0", "thread index")
    P(f"v_lshlrev_b32 {v(t2)}, 3, {v(t1)}", "out byte offset (4 bf16)")
    P(f"v_lshlrev_b32 {v(t1)}, 4, {v(t1)}", "fp32 byte offset")
    P(f"s_waitcnt lgkmcnt(0)")
    P(f"s_mov_b32 s{SRD_S}, s8"); P(f"s_mov_b32 s{SRD_S+1}, s9"); P(f"s_mov_b32 s{SRD_S+2}, {WS_USED}"); P(f"s_mov_b32 s{SRD_S+3}, 0x00020000")
    P(f"s_mov_b32 s{SRD_O}, s4"); P(f"s_mov_b32 s{SRD_O+1}, s5"); P(f"s_mov_b32 s{SRD_O+2}, 32768"); P(f"s_mov_b32 s{SRD_O+3}, 0x00020000")
    P(f"s_mov_b32 s20, {WS_OP}")
    for h in range(32):
        if h: P(f"s_add_u32 s20, s20, 65536")
        P(f"buffer_load_dwordx4 {vr(R[h],4)}, {v(t1)}, s[{SRD_S}:{SRD_S+3}], s20 offen")
    for h in range(1, 32):
        P(f"s_waitcnt vmcnt({31-h})")
        for r in range(4):
            P(f"v_add_f32 {v(R[0]+r)}, {v(R[0]+r)}, {v(R[h]+r)}")
    P(f"v_cvt_pk_bf16_f32 {v(OUTR)}, {v(R[0])}, {v(R[0]+1)}")
    P(f"v_cvt_pk_bf16_f32 {v(OUTR+1)}, {v(R[0]+2)}, {v(R[0]+3)}")
    P(f"buffer_store_dwordx2 {vr(OUTR,2)}, {v(t2)}, s[{SRD_O}:{SRD_O+3}], 0 offen")
    P.label(f"{name}_end")
    P("s_endpgm")
    probs = verify(P, name)
    return P, NVGPR, 32, 0, probs

if __name__ == "__main__":
    P, nv, ns, lds, probs = gen_k2()
    print(P.text())
    print(nv, ns, lds)
    for p in probs: print(p)
```

```python
import sys
sys.path.insert(0, "dev")
import gen

HEADER = """; standalone__gqa_block_cached__sampling  (generated by dev/gen.py)
"""

def make(kernels, path):
    out = [HEADER.rstrip("\n")]
    for (name, grid, block, P, nv, ns, lds) in kernels:
        out.append(f"; @launch kernel={name} grid=({grid},1,1) block=({block},1,1) lds={lds}")
    out.append('.amdgcn_target "amdgcn-amd-amdhsa--gfx950"')
    out.append(".text")
    seen = set()
    for (name, grid, block, P, nv, ns, lds) in kernels:
        if name in seen: continue
        seen.add(name)
        out.append(gen.kernel_header(name))
        out.append(P.text())
        out.append("")
    out.append('.section .rodata,"a"')
    seen = set()
    for (name, grid, block, P, nv, ns, lds) in kernels:
        if name in seen: continue
        seen.add(name)
        out.append(gen.kernel_desc(name, nv, ns, accum=getattr(P, 'accum', None)))
    open(path, "w").write("\n".join(out) + "\n")
```

```python
import sys
sys.path.insert(0, "dev")
import gen, mkasm
def build(path, WPW=4, NS=2):
    ks = []
    P, nv, ns, lds, pr = gen.gen_k1("qproj_kernel"); assert not pr, pr[:3]
    ks.append(("qproj_kernel", 32, 256, P, nv, ns, lds))
    P, nv, ns, lds, pr = gen.gen_k2("attn_kernel", WPW=WPW, NS=NS, nt=True); assert not pr, pr[:3]
    ks.append(("attn_kernel", 256, 64 * WPW, P, nv, ns, lds))
    P, nv, ns, lds, pr = gen.gen_k3("oproj_kernel"); assert not pr, pr[:3]
    ks.append(("oproj_kernel", 128, 256, P, nv, ns, lds))
    P, nv, ns, lds, pr = gen.gen_k4("oreduce_kernel"); assert not pr, pr[:3]
    ks.append(("oreduce_kernel", 64, 64, P, nv, ns, lds))
    mkasm.make(ks, path)
if __name__ == "__main__":
    path = sys.argv[1] if len(sys.argv) > 1 else "standalone__gqa_block_cached__sampling.s"
    build(path)
    print("wrote", path)
```

```python
import re

def v(n): return f"v{n}"
def vr(b, n): return f"v[{b}:{b+n-1}]" if n > 1 else f"v{b}"
def s(n): return f"s{n}"
def sr(b, n): return f"s[{b}:{b+n-1}]" if n > 1 else f"s{b}"

_REG = re.compile(r'^(-?|\|?)(?:abs\()?([vsa])(?:(\d+)|\[(\d+):(\d+)\])\)?\|?$')

def parse_reg(tok):
    tok = tok.strip()
    if tok.startswith('-'): tok = tok[1:]
    if tok.startswith('abs(') and tok.endswith(')'): tok = tok[4:-1]
    m = re.match(r'^([vsa])(\d+)$', tok)
    if m: return (m.group(1), int(m.group(2)), int(m.group(2)))
    m = re.match(r'^([vsa])\[(\d+):(\d+)\]$', tok)
    if m: return (m.group(1), int(m.group(2)), int(m.group(3)))
    if tok in ('vcc',): return ('s', 106, 107)
    if tok == 'vcc_lo': return ('s', 106, 106)
    if tok == 'exec': return ('s', 126, 127)
    if tok == 'm0': return ('s', 124, 124)
    return None

def regset(r):
    if r is None: return set()
    k, a, b = r
    return {(k, i) for i in range(a, b + 1)}

TRANS = ('v_exp_f32', 'v_log_f32', 'v_rcp_f32', 'v_rsq_f32', 'v_sqrt_f32', 'v_sin_f32', 'v_cos_f32')

class Inst:
    __slots__ = ('text', 'mn', 'kind', 'reads', 'writes', 'nopn', 'comment', 'label', 'passes', 'srcC', 'wide_store')
    def __init__(self, text, comment=None):
        self.text = text.strip(); self.comment = comment; self.label = None
        self.reads = set(); self.writes = set(); self.nopn = 1; self.passes = 0; self.srcC = set(); self.wide_store = False
        t = self.text
        if t.endswith(':'):
            self.mn = t; self.kind = 'label'; self.label = t[:-1]; self.nopn = 0; return
        parts = t.split(None, 1)
        self.mn = parts[0]
        ops = []
        if len(parts) > 1:
            depth = 0; cur = ''
            for ch in parts[1]:
                if ch == '[' or ch == '(': depth += 1
                if ch == ']' or ch == ')': depth -= 1
                if ch == ',' and depth == 0:
                    ops.append(cur.strip()); cur = ''
                else: cur += ch
            if cur.strip(): ops.append(cur.strip())
        clean = []
        for o in ops:
            toks = o.split()
            clean.append(toks[0] if toks else '')
        mn = self.mn
        R = [parse_reg(o) for o in clean]
        if mn.startswith('v_mfma'):
            self.kind = 'mfma'
            self.writes |= regset(R[0])
            for r in R[1:4]: self.reads |= regset(r)
            self.srcC = regset(R[3]) if len(R) > 3 else set()
            if '16x16x32' in mn: self.passes = 4
            elif '32x32x16' in mn: self.passes = 8
            else: raise ValueError("unknown mfma passes: " + mn)
        elif mn.startswith('v_permlane') and 'swap' in mn:
            self.kind = 'valu'
            for r in R[:2]:
                self.reads |= regset(r); self.writes |= regset(r)
        elif mn.startswith('v_cmp') or mn.startswith('v_readfirstlane') or mn.startswith('v_readlane'):
            self.kind = 'valu'
            self.writes |= regset(R[0])
            for r in R[1:]: self.reads |= regset(r)
        elif mn.startswith('v_'):
            self.kind = 'trans' if mn.split('_e')[0] in TRANS or mn in TRANS else 'valu'
            self.writes |= regset(R[0])
            for r in R[1:]: self.reads |= regset(r)
            if mn.startswith('v_fmac') or mn.startswith('v_dot2c'): self.reads |= regset(R[0])
            if mn.startswith('v_add_co') or mn.startswith('v_addc_co') or mn.startswith('v_sub_co'):
                self.writes |= regset(R[1])
        elif mn.startswith('buffer_load') or mn.startswith('global_load'):
            self.kind = 'vmem_load'
            self.writes |= regset(R[0])
            for r in R[1:]: self.reads |= regset(r)
        elif mn.startswith('buffer_store') or mn.startswith('global_store') or mn.startswith('buffer_atomic') or mn.startswith('global_atomic'):
            self.kind = 'vmem_store'
            for r in R: self.reads |= regset(r)
            if 'x3' in mn or 'x4' in mn: self.wide_store = True
            if ' sc0' in t and 'atomic' in mn:
                self.kind = 'vmem_load'; self.writes |= regset(R[0])
        elif mn.startswith('ds_read') or mn.startswith('ds_bpermute') or mn.startswith('ds_swizzle'):
            self.kind = 'ds_load'
            self.writes |= regset(R[0])
            for r in R[1:]: self.reads |= regset(r)
        elif mn.startswith('ds_write') or mn.startswith('ds_add') or mn.startswith('ds_max'):
            self.kind = 'ds_store'
            for r in R: self.reads |= regset(r)
        elif mn.startswith('s_load') or mn.startswith('s_memtime'):
            self.kind = 'smem'
            self.writes |= regset(R[0])
            for r in R[1:]: self.reads |= regset(r)
        elif mn == 's_nop':
            self.kind = 'nop'; self.nopn = int(clean[0], 0) + 1
        elif mn == 's_waitcnt':
            self.kind = 'wait'
        elif mn.startswith('s_cmp') or mn.startswith('s_cbranch') or mn in ('s_branch', 's_barrier', 's_endpgm', 's_setprio', 's_sleep'):
            self.kind = 'salu'
            for r in R: self.reads |= regset(r)
        elif mn.startswith('s_'):
            self.kind = 'salu'
            self.writes |= regset(R[0])
            for r in R[1:]: self.reads |= regset(r)
        else:
            raise ValueError("unknown instruction: " + t)

    def __str__(self):
        if self.kind == 'label': return self.text
        return "    " + self.text + (f"    ; {self.comment}" if self.comment else "")

class Prog:
    def __init__(self, prof=False):
        self.code = []
        self.trace = []
        self._record = True
        self.prof = prof
        self.stamps = []
        self.stamp_base = 60
    def stamp(self, name):
        if not self.prof: return
        k = len(self.stamps); r = self.stamp_base + 2 * k
        assert r + 1 < 100
        self.emit(f"s_memtime s[{r}:{r+1}]", f"stamp {name}")
        self.emit("s_waitcnt lgkmcnt(0)")
        self.stamps.append(name)
    def dump_stamps(self, srd, slot_sgpr_expr_fn, vtmp, vtmp2, base):
        if not self.prof: return
        slot = slot_sgpr_expr_fn()
        self.emit(f"s_lshl_b32 s{slot}, s{slot}, 7")
        self.emit(f"s_add_u32 s{slot}, s{slot}, {base}")
        self.emit(f"v_mov_b32 v{vtmp2}, 0")
        for k, name in enumerate(self.stamps):
            self.emit(f"v_mov_b32 v{vtmp}, s{self.stamp_base + 2*k}")
            self.emit(f"buffer_store_dword v{vtmp}, v{vtmp2}, s[{srd}:{srd+3}], s{slot} offen offset:{k*4}")
    def emit(self, text, comment=None):
        i = Inst(text, comment); self.code.append(i)
        if self._record: self.trace.append(i)
        return i
    def __call__(self, text, comment=None): return self.emit(text, comment)
    def label(self, name): return self.emit(name + ":")
    def comment(self, c):
        i = Inst("s_nop 0"); i.text = "; " + c; i.kind = 'label'; i.nopn = 0; i.mn = ';'; i.label = None
        self.code.append(i); return i
    def nop(self, n):
        while n > 0:
            k = min(n, 16); self.emit(f"s_nop {k-1}"); n -= k
    def loop(self, body_fn, trips):
        start = len(self.code)
        tstart = len(self.trace)
        body_fn()
        body = self.trace[tstart:]
        for _ in range(trips - 1): self.trace.extend(body)
    def text(self):
        out = []
        for i in self.code:
            if i.kind == 'label' and i.mn == ';': out.append("    " + i.text)
            else: out.append(str(i))
        return "\n".join(out)

def verify(prog, name="", verbose=True, autopad=False):
    probs = []
    vm = []
    lg = []
    hist = []
    pos = 0
    pads = {}
    for idx, ins in enumerate(prog.trace):
        if ins.kind == 'label': continue
        if ins.kind == 'wait':
            m = re.search(r'vmcnt\((\d+)\)', ins.text)
            if m:
                n = int(m.group(1))
                while len(vm) > n: vm.pop(0)
            m = re.search(r'lgkmcnt\((\d+)\)', ins.text)
            if m:
                n = int(m.group(1))
                if any(k == 'smem' for k, _ in lg) and n != 0:
                    probs.append(f"{name}: counted lgkmcnt with SMEM outstanding at: {ins}")
                while len(lg) > n: lg.pop(0)
        else:
            touched = ins.reads | ins.writes
            for (li, dst) in vm:
                if dst & touched:
                    probs.append(f"{name}: missing vmcnt wait: '{ins.text}' touches {sorted(dst & touched)[:4]} still being loaded by '{li.text}'")
                    break
            for (k, dst) in lg:
                if dst & touched:
                    probs.append(f"{name}: missing lgkmcnt wait: '{ins.text}' touches {sorted(dst & touched)[:4]}")
                    break
        def need(req, why, prod):
            dist = pos - prod[1] - prod[0].nopn
            if dist < req:
                probs.append(f"{name}: hazard ({why}): need {req} have {dist}: '{prod[0].text}' -> '{ins.text}'")
        if ins.kind in ('valu', 'trans', 'mfma', 'vmem_load', 'vmem_store', 'ds_load', 'ds_store', 'salu'):
            for prod in reversed(hist):
                p = prod[0]
                if pos - prod[1] > 40: break
                if p.kind in ('valu', 'trans') and ins.kind == 'mfma' and (p.writes & ins.reads):
                    need(2, "VALU->MFMA read", prod)
                if p.kind == 'mfma':
                    ps = p.passes
                    raw_tab = {2: 5, 4: 8, 8: 12, 16: 20}
                    ovl_tab = {2: 4, 4: 6, 8: 10, 16: 18}
                    war_tab = {2: 1, 4: 3, 8: 7, 16: 15}
                    if ins.kind == 'mfma':
                        ab = ins.reads - ins.srcC
                        if p.writes & ab: need(raw_tab[ps], "MFMA D -> MFMA A/B", prod)
                        if p.writes & ins.srcC:
                            if p.writes == ins.srcC and ins.passes == ps:
                                if ps == 2: need(2, "MFMA D->SrcC same (2pass)", prod)
                            else: need(ovl_tab[ps], "MFMA D -> MFMA SrcC overlap", prod)
                    else:
                        if p.writes & (ins.reads | ins.writes): need(raw_tab[ps], "MFMA D -> VALU/VMEM/DS", prod)
                        if ins.kind in ('valu', 'trans') and (p.srcC & ins.writes): need(war_tab[ps], "MFMA SrcC WAR", prod)
                if p.kind == 'trans' and ins.kind in ('valu', 'mfma') and (p.writes & ins.reads):
                    need(1, "trans -> VALU", prod)
                if p.kind in ('valu', 'trans') and ins.mn.startswith('v_permlane') and (p.writes & ins.reads):
                    need(2, "VALU -> permlane", prod)
                if p.kind in ('valu', 'trans') and (ins.mn.startswith('v_readfirstlane') or ins.mn.startswith('v_readlane')) and (p.writes & ins.reads):
                    need(1, "VALU -> readlane", prod)
                swr = {r for r in p.writes if r[0] == 's'}
                if p.kind in ('valu', 'trans') and swr:
                    if ins.kind in ('vmem_load', 'vmem_store') and (swr & ins.reads): need(5, "VALU sgpr -> VMEM", prod)
                    if ins.kind in ('valu', 'trans') and (swr & ins.reads): need(2, "VALU sgpr -> VALU const", prod)
                if p.kind == 'vmem_store' and p.wide_store and ins.kind in ('valu', 'trans') and (p.reads & ins.writes):
                    need(2, "wide store data WAR", prod)
        if ins.kind == 'vmem_load': vm.append((ins, set(ins.writes)))
        elif ins.kind == 'vmem_store': vm.append((ins, set()))
        elif ins.kind == 'ds_load': lg.append(('ds', set(ins.writes)))
        elif ins.kind == 'ds_store': lg.append(('ds', set()))
        elif ins.kind == 'smem': lg.append(('smem', set(ins.writes)))
        if len(vm) > 63: probs.append(f"{name}: vmcnt overflow (>63 outstanding) at {ins.text}")
        if len(lg) > 15: probs.append(f"{name}: lgkmcnt overflow (>15 outstanding) at {ins.text}")
        hist.append((ins, pos))
        pos += ins.nopn
        if len(hist) > 64: hist.pop(0)
    return probs
```

```python
import math, sys
sys.path.insert(0, "dev")
from asmlib import Prog, verify, v, vr, s, sr

B, SQ, D, HQ, HKV, SK, DH = 8, 4, 512, 32, 8, 4096, 128
WS_Q   = 0
WS_PO  = 0x40000
WS_PML = WS_PO + 256 * 8192
WS_OP  = WS_PML + 256 * 128
WS_PROF = 0x800000
WS_USED = 0x1000000
C1 = (DH ** -0.5) * math.log2(math.e)

def f32hex(x):
    import struct
    return "0x%08x" % struct.unpack("<I", struct.pack("<f", x))[0]

class VAlloc:
    def __init__(self, start=0): self.n = start
    def __call__(self, cnt=1, align=1):
        self.n = (self.n + align - 1) // align * align
        b = self.n; self.n += cnt; return b

def kernel_header(name):
    return f""".globl {name}
.p2align 8
.type {name},@function
{name}:"""

def kernel_desc(name, nvgpr, nsgpr, lds=0, accum=None):
    acc = (nvgpr + 3) // 4 * 4 if accum is None else accum
    return f""".p2align 6
.amdhsa_kernel {name}
  .amdhsa_next_free_vgpr {nvgpr}
  .amdhsa_next_free_sgpr {nsgpr}
  .amdhsa_accum_offset {acc}
  .amdhsa_group_segment_fixed_size 0
  .amdhsa_kernarg_size 64
  .amdhsa_user_sgpr_count 2
  .amdhsa_user_sgpr_kernarg_segment_ptr 1
  .amdhsa_system_sgpr_workgroup_id_x 1
.end_amdhsa_kernel"""

def gen_k2(name="attn_kernel", WPW=4, NS=2, nt=False, prof=False):
    P = Prog(prof)
    KPW = 1024 // WPW
    U = KPW // 32
    assert U % NS == 0
    CHUNK = KPW * 256
    NTs = " nt" if nt else ""
    NW = 8 * (2 * NS - 1) + 0
    NW = 8 + 16 * (NS - 1)
    sKV = 4
    sWS = 8
    SRD_K, SRD_V, SRD_W = 12, 16, 20
    sWave, sPre, sCnt, sC1, sSelE, sSelO, sQoff, sG, sT, sT2, sOut = 24, 25, 26, 27, 28, 29, 30, 31, 32, 33, 34
    NSGPR = 40
    va = VAlloc(1)
    vLane = va(); vC = va(); vGp = va(); t1 = va(); t2 = va(); t3 = va()
    vKoff = [va(), va()]; vVoff = [va(), va()]; vQoff = va()
    vM = va(2, 2); vL = vM + 1
    vMn = va(); vAlpha = va(); vMc = va()
    Q = [va(4, 4) for _ in range(4)]
    ST = [va(4, 4) for _ in range(2)]
    PB = va(4, 4)
    VT = [va(4, 4) for _ in range(2)]
    O = [va(4, 4) for _ in range(8)]
    K = [[[va(4, 4) for kk in range(4)] for t in range(2)] for X in range(NS)]
    V = [[va(4, 4) for j in range(8)] for X in range(NS)]
    NVGPR = va.n

    P(f"s_cmp_ge_u32 s2, 256")
    P(f"s_cbranch_scc1 {name}_end")
    P.stamp("start")
    P(f"s_load_dwordx4 s[4:7], s[0:1], 8", "k_cache, v_cache")
    P(f"s_load_dwordx2 s[8:9], s[0:1], 56", "d_ws")
    P(f"v_lshrrev_b32 {v(t1)}, 6, v0", "wave id")
    P(f"v_and_b32 {v(vLane)}, 63, v0")
    P(f"v_readfirstlane_b32 s{sWave}, {v(t1)}")
    P(f"v_and_b32 {v(vC)}, 15, {v(vLane)}", "m / c")
    P(f"v_lshrrev_b32 {v(vGp)}, 4, {v(vLane)}", "g")
    P(f"v_and_b32 {v(t1)}, 3, {v(vC)}")
    P(f"v_lshlrev_b32 {v(t1)}, 10, {v(t1)}")
    P(f"v_lshrrev_b32 {v(t2)}, 2, {v(vC)}")
    P(f"v_lshlrev_b32 {v(t2)}, 8, {v(t2)}")
    P(f"v_add_u32 {v(t1)}, {v(t1)}, {v(t2)}")
    P(f"v_lshlrev_b32 {v(t3)}, 4, {v(vGp)}")
    P(f"v_add_u32 {v(vKoff[0])}, {v(t1)}, {v(t3)}")
    P(f"v_add_u32 {v(vKoff[1])}, 4096, {v(vKoff[0])}")
    P(f"v_lshlrev_b32 {v(vVoff[0])}, 4, {v(vLane)}")
    P(f"v_add_u32 {v(vVoff[1])}, 4096, {v(vVoff[0])}")
    P(f"v_and_b32 {v(t1)}, 3, {v(vC)}")
    P(f"v_lshlrev_b32 {v(t1)}, 13, {v(t1)}")
    P(f"v_add_u32 {v(t1)}, {v(t1)}, {v(t2)}")
    P(f"v_add_u32 {v(vQoff)}, {v(t1)}, {v(t3)}")
    P(f"s_lshr_b32 s{sG}, s2, 2", "group")
    P(f"s_and_b32 s{sT2}, s2, 3", "split")
    P(f"s_lshl_b32 s{sT}, s{sG}, 20")
    P(f"s_lshl_b32 s{sT2}, s{sT2}, 18")
    P(f"s_add_u32 s{sT}, s{sT}, s{sT2}")
    P(f"s_waitcnt lgkmcnt(0)")
    P.stamp("kernarg")
    P(f"s_lshl_b32 s{sT2}, s{sWave}, {int(math.log2(CHUNK))}")
    P(f"s_add_u32 s{sT}, s{sT}, s{sT2}", "byte offset of this wave's chunk")
    for (srd, lo) in ((SRD_K, 4), (SRD_V, 6)):
        P(f"s_add_u32 s{srd}, s{lo}, s{sT}")
        P(f"s_addc_u32 s{srd+1}, s{lo+1}, 0")
        P(f"s_mov_b32 s{srd+2}, {CHUNK}")
        P(f"s_mov_b32 s{srd+3}, 0x00020000")
    P(f"s_mov_b32 s{SRD_W}, s8")
    P(f"s_mov_b32 s{SRD_W+1}, s9")
    P(f"s_mov_b32 s{SRD_W+2}, {WS_USED}")
    P(f"s_mov_b32 s{SRD_W+3}, 0x00020000")
    P(f"s_lshr_b32 s{sT}, s{sG}, 3")
    P(f"s_lshl_b32 s{sT}, s{sT}, 15")
    P(f"s_and_b32 s{sT2}, s{sG}, 7")
    P(f"s_lshl_b32 s{sT2}, s{sT2}, 10")
    P(f"s_add_u32 s{sQoff}, s{sT}, s{sT2}", "q soffset = b*32768 + hkv*1024")
    for kk in range(4):
        P(f"buffer_load_dwordx4 {vr(Q[kk],4)}, {v(vQoff)}, s[{SRD_W}:{SRD_W+3}], s{sQoff} offen offset:{kk*64}", f"Q kk={kk}")
    def loadK(X, soff):
        for t in range(2):
            for kk in range(4):
                P(f"buffer_load_dwordx4 {vr(K[X][t][kk],4)}, {v(vKoff[t])}, s[{SRD_K}:{SRD_K+3}], {soff} offen offset:{kk*64}{NTs}")
    def loadV(X, soff):
        for j in range(8):
            P(f"buffer_load_dwordx4 {vr(V[X][j],4)}, {v(vVoff[j>>2])}, s[{SRD_V}:{SRD_V+3}], {soff} offen offset:{(j&3)*1024}{NTs}")
    P(f"s_mov_b32 s{sPre}, 0")
    P(f"s_mov_b32 s{sC1}, {f32hex(C1)}")
    P(f"s_mov_b32 s{sSelE}, 0x05040100")
    P(f"s_mov_b32 s{sSelO}, 0x07060302")
    for X in range(NS):
        loadK(X, f"s{sPre}"); loadV(X, f"s{sPre}")
        P(f"s_add_u32 s{sPre}, s{sPre}, 8192")
    P(f"v_mov_b32 {v(vM)}, 0xff800000", "m = -inf")
    P(f"v_mov_b32 {v(vL)}, 0")
    for i in range(8):
        for r in range(4):
            P(f"v_mov_b32 {v(O[i]+r)}, 0")
    P(f"s_mov_b32 s{sCnt}, {U // NS}")
    P.stamp("issued")

    def unit(X):
        P.comment(f"---- unit, stage {X}")
        P(f"s_waitcnt vmcnt({NW})", "K(u) (and older) landed")
        for kk in range(4):
            for t in range(2):
                C = "0" if kk == 0 else vr(ST[t], 4)
                P(f"v_mfma_f32_16x16x32_bf16 {vr(ST[t],4)}, {vr(K[X][t][kk],4)}, {vr(Q[kk],4)}, {C}")
        loadK(X, f"s{sPre}")
        a, b = ST[0], ST[1]
        P(f"v_max3_f32 {v(t1)}, {v(a)}, {v(a+1)}, {v(a+2)}")
        P(f"v_max3_f32 {v(t1)}, {v(t1)}, {v(a+3)}, {v(b)}")
        P(f"v_max3_f32 {v(t1)}, {v(t1)}, {v(b+1)}, {v(b+2)}")
        P(f"v_max_f32 {v(t1)}, {v(t1)}, {v(b+3)}")
        P(f"v_mov_b32 {v(t2)}, {v(t1)}")
        P.nop(2)
        P(f"v_permlane32_swap_b32 {v(t1)}, {v(t2)}")
        P(f"v_max_f32 {v(t1)}, {v(t1)}, {v(t2)}")
        P(f"v_mov_b32 {v(t2)}, {v(t1)}")
        P.nop(2)
        P(f"v_permlane16_swap_b32 {v(t1)}, {v(t2)}")
        P(f"v_max_f32 {v(t1)}, {v(t1)}, {v(t2)}")
        P(f"v_max_f32 {v(vMn)}, {v(vM)}, {v(t1)}", "m_new")
        P(f"v_sub_f32 {v(t2)}, {v(vM)}, {v(vMn)}")
        P(f"v_mul_f32 {v(t2)}, s{sC1}, {v(t2)}")
        P(f"v_exp_f32 {v(vAlpha)}, {v(t2)}")
        P(f"v_mul_f32 {v(vMc)}, s{sC1}, {v(vMn)}")
        P(f"v_mov_b32 {v(vM)}, {v(vMn)}")
        sreg = [a, a+1, a+2, a+3, b, b+1, b+2, b+3]
        for k in sreg:
            P(f"v_fma_f32 {v(k)}, {v(k)}, s{sC1}, -{v(vMc)}")
        for k in sreg:
            P(f"v_exp_f32 {v(k)}, {v(k)}")
        for i in range(8):
            for r in range(4):
                P(f"v_mul_f32 {v(O[i]+r)}, {v(O[i]+r)}, {v(vAlpha)}")
        P(f"v_add_f32 {v(t1)}, {v(a)}, {v(a+1)}")
        P(f"v_add_f32 {v(t2)}, {v(a+2)}, {v(a+3)}")
        P(f"v_add_f32 {v(t3)}, {v(b)}, {v(b+1)}")
        P(f"v_add_f32 {v(t1)}, {v(t1)}, {v(t2)}")
        P(f"v_add_f32 {v(t2)}, {v(b+2)}, {v(b+3)}")
        P(f"v_add_f32 {v(t3)}, {v(t3)}, {v(t2)}")
        P(f"v_add_f32 {v(t1)}, {v(t1)}, {v(t3)}")
        P(f"v_fma_f32 {v(vL)}, {v(vL)}, {v(vAlpha)}, {v(t1)}", "l = l*alpha + sum p")
        P(f"v_cvt_pk_bf16_f32 {v(PB)}, {v(a)}, {v(a+1)}")
        P(f"v_cvt_pk_bf16_f32 {v(PB+1)}, {v(a+2)}, {v(a+3)}")
        P(f"v_cvt_pk_bf16_f32 {v(PB+2)}, {v(b)}, {v(b+1)}")
        P(f"v_cvt_pk_bf16_f32 {v(PB+3)}, {v(b+2)}, {v(b+3)}")
        P(f"s_waitcnt vmcnt({NW})", "V(u) landed")
        def perm(i):
            sel = sSelE if (i & 1) == 0 else sSelO
            for p in range(4):
                P(f"v_perm_b32 {v(VT[i%2]+p)}, {v(V[X][2*p+1]+(i>>1))}, {v(V[X][2*p]+(i>>1))}, s{sel}")
        def pv(i):
            P(f"v_mfma_f32_16x16x32_bf16 {vr(O[i],4)}, {vr(VT[i%2],4)}, {vr(PB,4)}, {vr(O[i],4)}")
        perm(0)
        for i in range(7):
            perm(i + 1)
            pv(i)
        loadV(X, f"s{sPre}")
        pv(7)
        P(f"s_add_u32 s{sPre}, s{sPre}, 8192")

    P.label(f"{name}_loop")
    def body():
        for X in range(NS): unit(X)
        P(f"s_sub_u32 s{sCnt}, s{sCnt}, 1")
        P(f"s_cmp_lg_u32 s{sCnt}, 0")
        P(f"s_cbranch_scc1 {name}_loop")
    P.loop(body, U // NS)

    P.stamp("loop")
    P("s_waitcnt vmcnt(0)", "trailing (out-of-range, zero-returning) prefetches must land before their regs are reused")
    P(f"v_mov_b32 {v(t2)}, {v(vL)}")
    P.nop(2)
    P(f"v_permlane32_swap_b32 {v(vL)}, {v(t2)}")
    P(f"v_add_f32 {v(vL)}, {v(vL)}, {v(t2)}")
    P(f"v_mov_b32 {v(t2)}, {v(vL)}")
    P.nop(2)
    P(f"v_permlane16_swap_b32 {v(vL)}, {v(t2)}")
    P(f"v_add_f32 {v(vL)}, {v(vL)}, {v(t2)}")
    LDS_ML = WPW * 8192
    P(f"s_lshl_b32 s{sT}, s{sWave}, 13")
    P(f"v_lshlrev_b32 {v(t1)}, 4, {v(vLane)}")
    P(f"v_add_u32 {v(t3)}, s{sT}, {v(t1)}", "lds O write addr")
    for i in range(8):
        P(f"ds_write_b128 {v(t3)}, {vr(O[i],4)} offset:{i*1024}")
    P(f"s_lshl_b32 s{sT}, s{sWave}, 7")
    P(f"s_add_u32 s{sT}, s{sT}, {LDS_ML}")
    P(f"v_lshlrev_b32 {v(t2)}, 3, {v(vC)}")
    P(f"v_add_u32 {v(vMn)}, s{sT}, {v(t2)}")
    P(f"ds_write_b64 {v(vMn)}, {vr(vM,2)}")
    P(f"s_waitcnt lgkmcnt(0)")
    P(f"s_barrier")
    P.stamp("barrier")
    scr = K[0][0][0]
    MLr = [scr + 2*w for w in range(WPW)]
    P(f"v_add_u32 {v(vMn)}, {LDS_ML}, {v(t2)}", "lds ML read addr (c*8)")
    for w in range(WPW):
        P(f"ds_read_b64 {vr(MLr[w],2)}, {v(vMn)} offset:{w*128}")
    SPW = 8 // WPW
    P(f"s_lshl_b32 s{sT}, s{sWave}, {int(math.log2(SPW*1024))}")
    P(f"v_add_u32 {v(t3)}, s{sT}, {v(t1)}", "lds O read addr = lane*16 + wave*SPW*1024")
    Rb = K[0][0][0] + 2 * WPW
    Rb = (Rb + 3) // 4 * 4
    Rr = [[Rb + (w * SPW + e) * 4 for e in range(SPW)] for w in range(WPW)]
    assert Rb + WPW * SPW * 4 <= K[0][0][0] + 64 * NS
    if WPW + WPW * SPW > 15:
        P(f"s_waitcnt lgkmcnt(0)")
    for w in range(WPW):
        for e in range(SPW):
            P(f"ds_read_b128 {vr(Rr[w][e],4)}, {v(t3)} offset:{w*8192 + e*1024}")
    if WPW + WPW * SPW <= 15:
        P(f"s_waitcnt lgkmcnt({WPW*SPW})")
    P(f"v_max_f32 {v(vMn)}, {v(MLr[0])}, {v(MLr[1])}")
    for w in range(2, WPW):
        P(f"v_max_f32 {v(vMn)}, {v(vMn)}, {v(MLr[w])}")
    sc = ST[0]
    scs = [ST[0] + w if w < 4 else ST[1] + (w - 4) for w in range(WPW)]
    for w in range(WPW):
        P(f"v_sub_f32 {v(scs[w])}, {v(MLr[w])}, {v(vMn)}")
    for w in range(WPW):
        P(f"v_mul_f32 {v(scs[w])}, s{sC1}, {v(scs[w])}")
    for w in range(WPW):
        P(f"v_exp_f32 {v(scs[w])}, {v(scs[w])}")
    P.nop(1)
    P(f"v_mul_f32 {v(vAlpha)}, {v(scs[0])}, {v(MLr[0]+1)}")
    for w in range(1, WPW):
        P(f"v_fma_f32 {v(vAlpha)}, {v(scs[w])}, {v(MLr[w]+1)}, {v(vAlpha)}", "L* = sum sc_w*L_w")
    P(f"s_waitcnt lgkmcnt(0)")
    acc = [O[e] for e in range(SPW)]
    for e in range(SPW):
        for r in range(4):
            P(f"v_mul_f32 {v(acc[e]+r)}, {v(scs[0])}, {v(Rr[0][e]+r)}")
        for w in range(1, WPW):
            for r in range(4):
                P(f"v_fma_f32 {v(acc[e]+r)}, {v(scs[w])}, {v(Rr[w][e]+r)}, {v(acc[e]+r)}")
    P(f"v_lshrrev_b32 {v(t1)}, 2, {v(vC)}")
    P(f"v_lshlrev_b32 {v(t1)}, 16, {v(t1)}", "hh*65536")
    P(f"v_lshlrev_b32 {v(t2)}, 14, {v(vGp)}", "g*16384")
    P(f"v_add_u32 {v(t1)}, {v(t1)}, {v(t2)}")
    P(f"v_and_b32 {v(t2)}, 3, {v(vC)}")
    P(f"v_lshlrev_b32 {v(t2)}, 4, {v(t2)}")
    P(f"v_add_u32 {v(t1)}, {v(t1)}, {v(t2)}")
    P(f"s_and_b32 s{sT}, s{sG}, 7")
    P(f"s_lshl_b32 s{sOut}, s{sT}, 18", "hkv*262144")
    P(f"s_lshr_b32 s{sT}, s{sG}, 5")
    P(f"s_lshl_b32 s{sT}, s{sT}, 13", "mt*8192  (mt = b>>2 = group>>5)")
    P(f"s_add_u32 s{sOut}, s{sOut}, s{sT}")
    P(f"s_and_b32 s{sT}, s2, 3")
    P(f"s_lshl_b32 s{sT}, s{sT}, 11", "sg*2048")
    P(f"s_add_u32 s{sOut}, s{sOut}, s{sT}")
    P(f"s_lshl_b32 s{sT}, s{sWave}, 8", "wave*256")
    P(f"s_add_u32 s{sOut}, s{sOut}, s{sT}")
    P(f"s_lshr_b32 s{sT}, s{sG}, 3")
    P(f"s_and_b32 s{sT}, s{sT}, 3")
    P(f"s_lshl_b32 s{sT}, s{sT}, 6", "(b&3)*64")
    P(f"s_add_u32 s{sOut}, s{sOut}, s{sT}")
    P(f"s_add_u32 s{sOut}, s{sOut}, {WS_PO}")
    for e in range(SPW):
        P(f"buffer_store_dwordx4 {vr(acc[e],4)}, {v(t1)}, s[{SRD_W}:{SRD_W+3}], s{sOut} offen offset:{e*1024}")
    P(f"v_lshlrev_b32 {v(t2)}, 3, {v(vC)}", "c*8 again for the ML store")
    P(f"s_cmp_lg_u32 s{sWave}, 0")
    P(f"s_cbranch_scc1 {name}_skipml")
    P(f"v_mov_b32 {v(vM)}, {v(vMn)}")
    P(f"v_mov_b32 {v(vL)}, {v(vAlpha)}")
    P(f"s_lshl_b32 s{sOut}, s2, 7")
    P(f"s_add_u32 s{sOut}, s{sOut}, {WS_PML}")
    P(f"buffer_store_dwordx2 {vr(vM,2)}, {v(t2)}, s[{SRD_W}:{SRD_W+3}], s{sOut} offen")
    P.label(f"{name}_skipml")
    P.stamp("end")
    def slot():
        P(f"s_mul_i32 s{sT}, s2, {WPW}"); P(f"s_add_u32 s{sT}, s{sT}, s{sWave}"); return sT
    P.dump_stamps(SRD_W, slot, t1, t3, WS_PROF)
    P.label(f"{name}_end")
    P("s_endpgm")
    probs = verify(P, name)
    lds = WPW * 8192 + WPW * 128
    return P, NVGPR, (100 if prof else NSGPR), lds, probs


def gen_k1(name="qproj_kernel", nt=True, prof=False):
    P = Prog(prof)
    NTs = " nt" if nt else ""
    SRD_X, SRD_W, SRD_S = 12, 16, 20
    sWave, sT, sT2, sSelE, sSelO, sWoff, sXoff = 24, 25, 26, 27, 28, 29, 30
    NSGPR = 40
    va = VAlloc(1)
    vLane = va(); vC = va(); vGp = va(); t1 = va(); t2 = va(); t3 = va()
    vWoff = [va() for j in range(8)]
    vXoff = [va(), va()]
    VT = [va(4, 4) for _ in range(2)]
    ACC = [[va(4, 4) for i in range(8)] for mt in range(2)]
    XA = [[va(4, 4) for mt in range(2)] for ku in range(4)]
    W = [[va(4, 4) for j in range(8)] for ku in range(4)]
    NVGPR = va.n
    P(f"s_cmp_ge_u32 s2, 32")
    P(f"s_cbranch_scc1 {name}_end")
    P.stamp("start")
    P(f"s_load_dwordx2 s[4:5], s[0:1], 0", "x")
    P(f"s_load_dwordx2 s[6:7], s[0:1], 24", "wq")
    P(f"s_load_dwordx2 s[8:9], s[0:1], 56", "ws")
    P(f"v_lshrrev_b32 {v(t1)}, 6, v0")
    P(f"v_and_b32 {v(vLane)}, 63, v0")
    P(f"v_readfirstlane_b32 s{sWave}, {v(t1)}")
    P(f"v_and_b32 {v(vC)}, 15, {v(vLane)}")
    P(f"v_lshrrev_b32 {v(vGp)}, 4, {v(vLane)}")
    P(f"v_lshlrev_b32 {v(t1)}, 16, {v(vGp)}")
    P(f"v_lshlrev_b32 {v(t2)}, 4, {v(vC)}")
    P(f"v_add_u32 {v(vWoff[0])}, {v(t1)}, {v(t2)}")
    for j in range(1, 8):
        P(f"v_add_u32 {v(vWoff[j])}, {j*8192}, {v(vWoff[0])}")
    P(f"v_lshlrev_b32 {v(t1)}, 10, {v(vC)}")
    P(f"v_lshlrev_b32 {v(t2)}, 4, {v(vGp)}")
    P(f"v_add_u32 {v(vXoff[0])}, {v(t1)}, {v(t2)}")
    P(f"v_add_u32 {v(vXoff[1])}, 16384, {v(vXoff[0])}")
    P(f"s_waitcnt lgkmcnt(0)")
    P.stamp("kernarg")
    for (srd, lo, nb) in ((SRD_X, 4, 32768), (SRD_W, 6, 4194304), (SRD_S, 8, WS_USED)):
        P(f"s_mov_b32 s{srd}, s{lo}")
        P(f"s_mov_b32 s{srd+1}, s{lo+1}")
        P(f"s_mov_b32 s{srd+2}, {nb}")
        P(f"s_mov_b32 s{srd+3}, 0x00020000")
    P(f"s_lshl_b32 s{sT}, s2, 8")
    P(f"s_lshl_b32 s{sT2}, s{sWave}, 20")
    P(f"s_add_u32 s{sWoff}, s{sT}, s{sT2}")
    P(f"s_lshl_b32 s{sXoff}, s{sWave}, 8")
    P(f"s_mov_b32 s{sSelE}, 0x05040100")
    P(f"s_mov_b32 s{sSelO}, 0x07060302")
    for ku in range(4):
        for mt in range(2):
            P(f"buffer_load_dwordx4 {vr(XA[ku][mt],4)}, {v(vXoff[mt])}, s[{SRD_X}:{SRD_X+3}], s{sXoff} offen offset:{ku*64}")
    for ku in range(4):
        if ku: P(f"s_add_u32 s{sWoff}, s{sWoff}, 262144")
        for j in range(8):
            P(f"buffer_load_dwordx4 {vr(W[ku][j],4)}, {v(vWoff[j])}, s[{SRD_W}:{SRD_W+3}], s{sWoff} offen{NTs}")
    P.stamp("issued")
    for ku in range(4):
        P(f"s_waitcnt vmcnt({(3-ku)*8})")
        P.stamp(f"ku{ku}")
        def perm(i):
            sel = sSelE if (i & 1) == 0 else sSelO
            for p in range(4):
                P(f"v_perm_b32 {v(VT[i%2]+p)}, {v(W[ku][2*p+1]+(i>>1))}, {v(W[ku][2*p]+(i>>1))}, s{sel}")
        def mm(i):
            for mt in range(2):
                C = "0" if ku == 0 else vr(ACC[mt][i], 4)
                P(f"v_mfma_f32_16x16x32_bf16 {vr(ACC[mt][i],4)}, {vr(XA[ku][mt],4)}, {vr(VT[i%2],4)}, {C}")
        perm(0)
        for i in range(8):
            if i + 1 < 8: perm(i + 1)
            else: P.nop(1)
            mm(i)
    P.nop(8)
    P.stamp("mfma")
    P(f"s_lshl_b32 s{sT}, s{sWave}, 14")
    P(f"v_lshlrev_b32 {v(t1)}, 4, {v(vLane)}")
    P(f"v_add_u32 {v(t3)}, s{sT}, {v(t1)}")
    for mt in range(2):
        for i in range(8):
            P(f"ds_write_b128 {v(t3)}, {vr(ACC[mt][i],4)} offset:{(mt*8+i)*1024}")
        if mt == 0: P("s_waitcnt lgkmcnt(4)")
    P(f"s_waitcnt lgkmcnt(0)")
    P(f"s_barrier")
    P.stamp("barrier")
    P(f"s_lshr_b32 s{sT}, s{sWave}, 1")
    P(f"s_lshl_b32 s{sT}, s{sT}, 13", "mt*8192")
    P(f"s_and_b32 s{sT2}, s{sWave}, 1")
    P(f"s_lshl_b32 s{sT2}, s{sT2}, 3")
    P(f"s_add_u32 s{sT}, s{sT}, s{sT2}")
    P(f"v_add_u32 {v(t3)}, s{sT}, {v(t1)}")
    Rb = W[0][0]
    R = [[Rb + (w * 8 + i) * 2 for i in range(8)] for w in range(4)]
    for w in range(4):
        for i in range(8):
            P(f"ds_read_b64 {vr(R[w][i],2)}, {v(t3)} offset:{w*16384 + i*1024}")
        if w % 2 == 1 or True:
            P(f"s_waitcnt lgkmcnt(0)")
    for w in range(1, 4):
        for i in range(8):
            for rr in range(2):
                P(f"v_add_f32 {v(R[0][i]+rr)}, {v(R[0][i]+rr)}, {v(R[w][i]+rr)}")
    OUTR = [VT[0], VT[1]]
    for rr in range(2):
        for p in range(4):
            P(f"v_cvt_pk_bf16_f32 {v(OUTR[rr]+p)}, {v(R[0][2*p]+rr)}, {v(R[0][2*p+1]+rr)}")
    P(f"v_lshlrev_b32 {v(t1)}, 15, {v(vGp)}")
    P(f"v_lshlrev_b32 {v(t2)}, 4, {v(vC)}")
    P(f"v_add_u32 {v(t1)}, {v(t1)}, {v(t2)}")
    P(f"v_add_u32 {v(t2)}, 8192, {v(t1)}")
    P(f"s_lshr_b32 s{sT}, s{sWave}, 1")
    P(f"s_lshl_b32 s{sT}, s{sT}, 17", "mt*16*8192")
    P(f"s_and_b32 s{sT2}, s{sWave}, 1")
    P(f"s_lshl_b32 s{sT2}, s{sT2}, 14", "rp*2*8192")
    P(f"s_add_u32 s{sT}, s{sT}, s{sT2}")
    P(f"s_lshl_b32 s{sT2}, s2, 8")
    P(f"s_add_u32 s{sT}, s{sT}, s{sT2}")
    if WS_Q: P(f"s_add_u32 s{sT}, s{sT}, {WS_Q}")
    P(f"buffer_store_dwordx4 {vr(OUTR[0],4)}, {v(t1)}, s[{SRD_S}:{SRD_S+3}], s{sT} offen")
    P(f"buffer_store_dwordx4 {vr(OUTR[1],4)}, {v(t2)}, s[{SRD_S}:{SRD_S+3}], s{sT} offen")
    P.stamp("end")
    def slot():
        P(f"s_lshl_b32 s{sT}, s2, 2"); P(f"s_add_u32 s{sT}, s{sT}, s{sWave}"); return sT
    P.dump_stamps(SRD_S, slot, t1, t2, WS_PROF)
    P.label(f"{name}_end")
    P("s_endpgm")
    probs = verify(P, name)
    return P, NVGPR, (100 if prof else NSGPR), 65536, probs

def gen_k3(name="oproj_kernel", nt=True, prof=False):
    P = Prog(prof)
    NTs = " nt" if nt else ""
    SRD_O, SRD_S = 12, 16
    sWave, sT, sT2, sSelE, sSelO, sWo, sML, sC1 = 24, 25, 26, 27, 28, 29, 30, 31
    sPO = [32, 33, 34, 35]
    sH, sHH, sHKV = 36, 37, 38
    NSGPR = 44
    va = VAlloc(1)
    vLane = va(); vC = va(); vGp = va(); t1 = va(); t2 = va(); t3 = va()
    vWo = [va() for j in range(4)]
    vPO = [va(), va()]; vML = [va(), va()]
    VT = [va(4, 4) for _ in range(2)]
    A = [va(4, 4) for mt in range(2)]
    F = [va() for sg in range(4)]; vMx = va(); vLs = va()
    ACC = [[va(4, 4) for i in range(8)] for mt in range(2)]
    W = [va(4, 4) for j in range(8)]
    PO = [[[va(4, 4) for e in range(2)] for sg in range(4)] for mt in range(2)]
    ML = [[va(2, 2) for sg in range(4)] for mt in range(2)]
    NVGPR = va.n
    P(f"s_cmp_ge_u32 s2, 128")
    P(f"s_cbranch_scc1 {name}_end")
    P.stamp("start")
    P(f"s_load_dwordx2 s[4:5], s[0:1], 32", "wo")
    P(f"s_load_dwordx2 s[8:9], s[0:1], 56", "ws")
    P(f"v_lshrrev_b32 {v(t1)}, 6, v0")
    P(f"v_and_b32 {v(vLane)}, 63, v0")
    P(f"v_readfirstlane_b32 s{sWave}, {v(t1)}")
    P(f"v_and_b32 {v(vC)}, 15, {v(vLane)}")
    P(f"v_lshrrev_b32 {v(vGp)}, 4, {v(vLane)}")
    P(f"v_lshlrev_b32 {v(t1)}, 11, {v(vGp)}")
    P(f"v_lshlrev_b32 {v(t2)}, 4, {v(vC)}")
    P(f"v_add_u32 {v(vWo[0])}, {v(t1)}, {v(t2)}")
    for j in range(1, 4):
        P(f"v_add_u32 {v(vWo[j])}, {j*8192}, {v(vWo[0])}")
    P(f"v_lshrrev_b32 {v(t2)}, 2, {v(vC)}")
    P(f"v_lshlrev_b32 {v(t2)}, 18, {v(t2)}")
    P(f"v_add_u32 {v(t2)}, {v(t2)}, {v(t1)}")
    P(f"v_and_b32 {v(t3)}, 3, {v(vC)}")
    P(f"v_lshlrev_b32 {v(t3)}, 4, {v(t3)}")
    P(f"v_add_u32 {v(vPO[0])}, {v(t2)}, {v(t3)}")
    P(f"v_add_u32 {v(vPO[1])}, 0x100000, {v(vPO[0])}")
    P(f"v_lshrrev_b32 {v(t2)}, 2, {v(vC)}")
    P(f"v_lshlrev_b32 {v(t2)}, 12, {v(t2)}")
    P(f"v_lshrrev_b32 {v(t3)}, 1, {v(t3)}")
    P(f"v_add_u32 {v(vML[0])}, {v(t2)}, {v(t3)}")
    P(f"v_add_u32 {v(vML[1])}, 16384, {v(vML[0])}")
    P(f"s_lshr_b32 s{sH}, s2, 2")
    P(f"s_and_b32 s{sHH}, s{sH}, 3")
    P(f"s_lshr_b32 s{sHKV}, s{sH}, 2")
    P(f"s_waitcnt lgkmcnt(0)")
    P.stamp("kernarg")
    for (srd, lo, nb) in ((SRD_O, 4, 4194304), (SRD_S, 8, WS_USED)):
        P(f"s_mov_b32 s{srd}, s{lo}")
        P(f"s_mov_b32 s{srd+1}, s{lo+1}")
        P(f"s_mov_b32 s{srd+2}, {nb}")
        P(f"s_mov_b32 s{srd+3}, 0x00020000")
    P(f"s_lshl_b32 s{sT}, s{sH}, 17")
    P(f"s_lshl_b32 s{sT2}, s{sWave}, 15")
    P(f"s_add_u32 s{sWo}, s{sT}, s{sT2}")
    P(f"s_and_b32 s{sT2}, s2, 3")
    P(f"s_lshl_b32 s{sT2}, s{sT2}, 8")
    P(f"s_add_u32 s{sWo}, s{sWo}, s{sT2}")
    for j in range(8):
        P(f"buffer_load_dwordx4 {vr(W[j],4)}, {v(vWo[j&3])}, s[{SRD_O}:{SRD_O+3}], s{sWo} offen offset:{(j>>2)*1024}{NTs}")
    P(f"s_lshl_b32 s{sT}, s{sHKV}, 9")
    P(f"s_lshl_b32 s{sT2}, s{sHH}, 5")
    P(f"s_add_u32 s{sML}, s{sT}, s{sT2}")
    P(f"s_add_u32 s{sML}, s{sML}, {WS_PML}")
    for mt in range(2):
        for sg in range(4):
            P(f"buffer_load_dwordx2 {vr(ML[mt][sg],2)}, {v(vML[mt])}, s[{SRD_S}:{SRD_S+3}], s{sML} offen offset:{sg*128}")
    P(f"s_lshl_b32 s{sT}, s{sHKV}, 18")
    P(f"s_lshl_b32 s{sT2}, s{sHH}, 16")
    P(f"s_add_u32 s{sT}, s{sT}, s{sT2}")
    P(f"s_lshl_b32 s{sT2}, s{sWave}, 14")
    P(f"s_add_u32 s{sT}, s{sT}, s{sT2}")
    for q4 in range(4):
        P(f"s_add_u32 s{sPO[q4]}, s{sT}, {WS_PO + (q4 >> 1) * 8192 + (q4 & 1) * 4096}")
    P(f"v_lshlrev_b32 {v(vPO[0])}, 4, {v(vLane)}")
    for mt in range(2):
        for sg in range(4):
            for e in range(2):
                P(f"buffer_load_dwordx4 {vr(PO[mt][sg][e],4)}, {v(vPO[0])}, s[{SRD_S}:{SRD_S+3}], s{sPO[mt*2 + (sg >> 1)]} offen offset:{(sg & 1) * 2048 + e * 1024}")
    P(f"s_mov_b32 s{sC1}, {f32hex(C1)}")
    P(f"s_mov_b32 s{sSelE}, 0x05040100")
    P(f"s_mov_b32 s{sSelO}, 0x07060302")
    P.stamp("issued")
    P(f"s_waitcnt vmcnt(16)", "wo + ML landed")
    P.stamp("ML")
    for mt in range(2):
        M_ = [ML[mt][sg] for sg in range(4)]
        P(f"v_max_f32 {v(vMx)}, {v(M_[0])}, {v(M_[1])}")
        P(f"v_max3_f32 {v(vMx)}, {v(vMx)}, {v(M_[2])}, {v(M_[3])}")
        for sg in range(4):
            P(f"v_sub_f32 {v(F[sg])}, {v(M_[sg])}, {v(vMx)}")
        for sg in range(4):
            P(f"v_mul_f32 {v(F[sg])}, s{sC1}, {v(F[sg])}")
        for sg in range(4):
            P(f"v_exp_f32 {v(F[sg])}, {v(F[sg])}")
        P.nop(1)
        P(f"v_mul_f32 {v(vLs)}, {v(F[0])}, {v(M_[0]+1)}")
        for sg in range(1, 4):
            P(f"v_fma_f32 {v(vLs)}, {v(F[sg])}, {v(M_[sg]+1)}, {v(vLs)}")
        P(f"v_rcp_f32 {v(vLs)}, {v(vLs)}")
        P.nop(1)
        for sg in range(4):
            P(f"v_mul_f32 {v(F[sg])}, {v(F[sg])}, {v(vLs)}")
        P(f"s_waitcnt vmcnt({8 if mt == 0 else 0})", "partial O of this M tile landed")
        for e in range(2):
            for r in range(4):
                P(f"v_mul_f32 {v(PO[mt][0][e]+r)}, {v(F[0])}, {v(PO[mt][0][e]+r)}")
            for sg in range(1, 4):
                for r in range(4):
                    P(f"v_fma_f32 {v(PO[mt][0][e]+r)}, {v(F[sg])}, {v(PO[mt][sg][e]+r)}, {v(PO[mt][0][e]+r)}")
        for e in range(2):
            for h2 in range(2):
                P(f"v_cvt_pk_bf16_f32 {v(A[mt]+2*e+h2)}, {v(PO[mt][0][e]+2*h2)}, {v(PO[mt][0][e]+2*h2+1)}")
    P.stamp("combined")
    P(f"s_waitcnt vmcnt(0)", "wo tile landed")
    P.stamp("wo")
    def perm(i):
        sel = sSelE if (i & 1) == 0 else sSelO
        for p in range(4):
            P(f"v_perm_b32 {v(VT[i%2]+p)}, {v(W[2*p+1]+(i>>1))}, {v(W[2*p]+(i>>1))}, s{sel}")
    def mm(i):
        for mt in range(2):
            P(f"v_mfma_f32_16x16x32_bf16 {vr(ACC[mt][i],4)}, {vr(A[mt],4)}, {vr(VT[i%2],4)}, 0")
    perm(0)
    for i in range(8):
        if i + 1 < 8: perm(i + 1)
        else: P.nop(1)
        mm(i)
    P.nop(8)
    P.stamp("mfma")
    P(f"s_lshl_b32 s{sT}, s{sWave}, 14")
    P(f"v_lshlrev_b32 {v(t1)}, 4, {v(vLane)}")
    P(f"v_add_u32 {v(t3)}, s{sT}, {v(t1)}")
    for mt in range(2):
        for i in range(8):
            P(f"ds_write_b128 {v(t3)}, {vr(ACC[mt][i],4)} offset:{(mt*8+i)*1024}")
        if mt == 0: P("s_waitcnt lgkmcnt(4)")
    P(f"s_waitcnt lgkmcnt(0)")
    P(f"s_barrier")
    P.stamp("barrier")
    P(f"s_lshr_b32 s{sT}, s{sWave}, 1")
    P(f"s_lshl_b32 s{sT}, s{sT}, 13", "mt*8192")
    P(f"s_and_b32 s{sT2}, s{sWave}, 1")
    P(f"s_lshl_b32 s{sT2}, s{sT2}, 3")
    P(f"s_add_u32 s{sT}, s{sT}, s{sT2}")
    P(f"v_add_u32 {v(t3)}, s{sT}, {v(t1)}")
    Rb = PO[0][0][0]
    R = [[Rb + (w * 8 + i) * 2 for i in range(8)] for w in range(4)]
    for w in range(4):
        for i in range(8):
            P(f"ds_read_b64 {vr(R[w][i],2)}, {v(t3)} offset:{w*16384 + i*1024}")
        P(f"s_waitcnt lgkmcnt(0)")
    for w in range(1, 4):
        for i in range(8):
            for rr in range(2):
                P(f"v_add_f32 {v(R[0][i]+rr)}, {v(R[0][i]+rr)}, {v(R[w][i]+rr)}")
    OUT = [ACC[0][0], ACC[0][2]]
    assert ACC[0][1] == ACC[0][0] + 4 and ACC[0][3] == ACC[0][2] + 4
    for rr in range(2):
        for i in range(8):
            P(f"v_mov_b32 {v(OUT[rr]+i)}, {v(R[0][i]+rr)}")
    P(f"v_lshlrev_b32 {v(t1)}, 13, {v(vGp)}", "g*4*2048")
    P(f"v_lshlrev_b32 {v(t2)}, 5, {v(vC)}")
    P(f"v_add_u32 {v(t1)}, {v(t1)}, {v(t2)}")
    P(f"s_lshr_b32 s{sT}, s{sWave}, 1")
    P(f"s_lshl_b32 s{sT}, s{sT}, 15", "mt*16*2048")
    P(f"s_and_b32 s{sT2}, s{sWave}, 1")
    P(f"s_lshl_b32 s{sT2}, s{sT2}, 12", "rp*2*2048")
    P(f"s_add_u32 s{sT}, s{sT}, s{sT2}")
    P(f"s_lshl_b32 s{sT2}, s{sH}, 16")
    P(f"s_add_u32 s{sT}, s{sT}, s{sT2}")
    P(f"s_and_b32 s{sT2}, s2, 3")
    P(f"s_lshl_b32 s{sT2}, s{sT2}, 9", "cb*128*4")
    P(f"s_add_u32 s{sT}, s{sT}, s{sT2}")
    P(f"s_add_u32 s{sT}, s{sT}, {WS_OP}")
    for rr in range(2):
        for hlf in range(2):
            P(f"buffer_store_dwordx4 {vr(OUT[rr]+4*hlf,4)}, {v(t1)}, s[{SRD_S}:{SRD_S+3}], s{sT} offen offset:{rr*2048 + hlf*16}")
    P.stamp("end")
    def slot():
        P(f"s_lshl_b32 s{sT}, s2, 2"); P(f"s_add_u32 s{sT}, s{sT}, s{sWave}"); return sT
    P.dump_stamps(SRD_S, slot, t1, t2, WS_PROF)
    P.label(f"{name}_end")
    P("s_endpgm")
    probs = verify(P, name)
    return P, NVGPR, (100 if prof else NSGPR), 65536, probs

def gen_k4(name="oreduce_kernel"):
    P = Prog()
    SRD_S, SRD_O = 12, 16
    va = VAlloc(1)
    t1 = va(); t2 = va()
    R = [va(4, 4) for h in range(32)]
    OUTR = va(2, 2)
    NVGPR = va.n
    P(f"s_cmp_ge_u32 s2, 64")
    P(f"s_cbranch_scc1 {name}_end")
    P(f"s_load_dwordx4 s[4:7], s[0:1], 40", "d_out, d_debug")
    P(f"s_load_dwordx2 s[8:9], s[0:1], 56", "ws")
    P(f"s_lshl_b32 s3, s2, 6")
    P(f"v_add_u32 {v(t1)}, s3, v0", "thread index")
    P(f"v_lshlrev_b32 {v(t2)}, 3, {v(t1)}", "out byte offset (4 bf16)")
    P(f"v_lshlrev_b32 {v(t1)}, 4, {v(t1)}", "fp32 byte offset")
    P(f"s_waitcnt lgkmcnt(0)")
    P(f"s_mov_b32 s{SRD_S}, s8"); P(f"s_mov_b32 s{SRD_S+1}, s9"); P(f"s_mov_b32 s{SRD_S+2}, {WS_USED}"); P(f"s_mov_b32 s{SRD_S+3}, 0x00020000")
    P(f"s_mov_b32 s{SRD_O}, s4"); P(f"s_mov_b32 s{SRD_O+1}, s5"); P(f"s_mov_b32 s{SRD_O+2}, 32768"); P(f"s_mov_b32 s{SRD_O+3}, 0x00020000")
    P(f"s_mov_b32 s20, {WS_OP}")
    for h in range(32):
        if h: P(f"s_add_u32 s20, s20, 65536")
        P(f"buffer_load_dwordx4 {vr(R[h],4)}, {v(t1)}, s[{SRD_S}:{SRD_S+3}], s20 offen")
    for h in range(1, 32):
        P(f"s_waitcnt vmcnt({31-h})")
        for r in range(4):
            P(f"v_add_f32 {v(R[0]+r)}, {v(R[0]+r)}, {v(R[h]+r)}")
    P(f"v_cvt_pk_bf16_f32 {v(OUTR)}, {v(R[0])}, {v(R[0]+1)}")
    P(f"v_cvt_pk_bf16_f32 {v(OUTR+1)}, {v(R[0]+2)}, {v(R[0]+3)}")
    P(f"buffer_store_dwordx2 {vr(OUTR,2)}, {v(t2)}, s[{SRD_O}:{SRD_O+3}], 0 offen")
    P.label(f"{name}_end")
    P("s_endpgm")
    probs = verify(P, name)
    return P, NVGPR, 32, 0, probs


def gen_k3b(name="oproj_kernel", nt=True, prof=False):
    P = Prog(prof)
    NTs = " nt" if nt else ""
    SRD_O, SRD_S = 12, 16
    sT, sT2, sSelE, sSelO, sWo, sML, sC1 = 25, 26, 27, 28, 29, 30, 31
    sPO = 32
    sH, sHH, sHKV = 40, 41, 42
    NSGPR = 48
    va = VAlloc(1)
    vC = va(); vGp = va(); t1 = va(); t2 = va(); t3 = va()
    vWo = [va() for j in range(4)]
    vPO = va(); vML = [va(), va()]
    VT = [va(4, 4) for _ in range(2)]
    A = [va(4, 4) for mt in range(2)]
    F = [[va() for sg in range(4)] for mt in range(2)]; vMx = va(); vLs = va()
    ML = [[va(2, 2) for sg in range(4)] for mt in range(2)]
    ACC = [[(mt * 8 + i) * 4 for i in range(8)] for mt in range(2)]
    W = [[va(4, 4) for j in range(8)] for st in range(2)]
    PO = [[[[va(4, 4) for e in range(2)] for sg in range(4)] for mt in range(2)] for st in range(2)]
    NVGPR = va.n
    ACCOFF = (NVGPR + 3) // 4 * 4
    P(f"s_cmp_ge_u32 s2, 128")
    P(f"s_cbranch_scc1 {name}_end")
    P.stamp("start")
    P(f"s_load_dwordx2 s[4:5], s[0:1], 32", "wo")
    P(f"s_load_dwordx2 s[8:9], s[0:1], 56", "ws")
    P(f"v_and_b32 {v(vC)}, 15, v0")
    P(f"v_lshrrev_b32 {v(vGp)}, 4, v0")
    P(f"v_lshlrev_b32 {v(t1)}, 11, {v(vGp)}")
    P(f"v_lshlrev_b32 {v(t2)}, 4, {v(vC)}")
    P(f"v_add_u32 {v(vWo[0])}, {v(t1)}, {v(t2)}")
    for j in range(1, 4):
        P(f"v_add_u32 {v(vWo[j])}, {j*8192}, {v(vWo[0])}")
    P(f"v_lshlrev_b32 {v(vPO)}, 4, v0")
    P(f"v_lshrrev_b32 {v(t2)}, 2, {v(vC)}")
    P(f"v_lshlrev_b32 {v(t2)}, 12, {v(t2)}")
    P(f"v_and_b32 {v(t3)}, 3, {v(vC)}")
    P(f"v_lshlrev_b32 {v(t3)}, 3, {v(t3)}")
    P(f"v_add_u32 {v(vML[0])}, {v(t2)}, {v(t3)}")
    P(f"v_add_u32 {v(vML[1])}, 16384, {v(vML[0])}")
    P(f"s_lshr_b32 s{sH}, s2, 2")
    P(f"s_and_b32 s{sHH}, s{sH}, 3")
    P(f"s_lshr_b32 s{sHKV}, s{sH}, 2")
    P(f"s_waitcnt lgkmcnt(0)")
    P.stamp("kernarg")
    for (srd, lo, nb) in ((SRD_O, 4, 4194304), (SRD_S, 8, WS_USED)):
        P(f"s_mov_b32 s{srd}, s{lo}")
        P(f"s_mov_b32 s{srd+1}, s{lo+1}")
        P(f"s_mov_b32 s{srd+2}, {nb}")
        P(f"s_mov_b32 s{srd+3}, 0x00020000")
    P(f"s_lshl_b32 s{sT}, s{sHKV}, 9")
    P(f"s_lshl_b32 s{sT2}, s{sHH}, 5")
    P(f"s_add_u32 s{sML}, s{sT}, s{sT2}")
    P(f"s_add_u32 s{sML}, s{sML}, {WS_PML}")
    for mt in range(2):
        for sg in range(4):
            P(f"buffer_load_dwordx2 {vr(ML[mt][sg],2)}, {v(vML[mt])}, s[{SRD_S}:{SRD_S+3}], s{sML} offen offset:{sg*128}")
    P(f"s_lshl_b32 s{sT}, s{sHKV}, 18")
    P(f"s_lshl_b32 s{sT2}, s{sHH}, 16")
    P(f"s_add_u32 s{sPO}, s{sT}, s{sT2}")
    P(f"s_add_u32 s{sPO}, s{sPO}, {WS_PO}")
    P(f"s_lshl_b32 s{sWo}, s{sH}, 17")
    P(f"s_and_b32 s{sT2}, s2, 3")
    P(f"s_lshl_b32 s{sT2}, s{sT2}, 8")
    P(f"s_add_u32 s{sWo}, s{sWo}, s{sT2}")
    P(f"s_mov_b32 s{sC1}, {f32hex(C1)}")
    P(f"s_mov_b32 s{sSelE}, 0x05040100")
    P(f"s_mov_b32 s{sSelO}, 0x07060302")
    def issue(ku):
        st = ku % 2
        for j in range(8):
            P(f"buffer_load_dwordx4 {vr(W[st][j],4)}, {v(vWo[j&3])}, s[{SRD_O}:{SRD_O+3}], s{sWo} offen offset:{(j>>2)*1024}{NTs}")
        P(f"s_add_u32 s{sWo}, s{sWo}, 32768")
        for q4 in range(4):
            P(f"s_add_u32 s{sPO+1+q4}, s{sPO}, {(q4 >> 1) * 8192 + (q4 & 1) * 4096}")
        for mt in range(2):
            for sg in range(4):
                for e in range(2):
                    P(f"buffer_load_dwordx4 {vr(PO[st][mt][sg][e],4)}, {v(vPO)}, s[{SRD_S}:{SRD_S+3}], s{sPO+1+mt*2+(sg>>1)} offen offset:{(sg & 1) * 2048 + e * 1024}")
        P(f"s_add_u32 s{sPO}, s{sPO}, 16384")
    issue(0); issue(1)
    P.stamp("issued")
    P(f"s_waitcnt vmcnt(48)", "ML landed")
    for mt in range(2):
        M_ = [ML[mt][sg] for sg in range(4)]
        P(f"v_max_f32 {v(vMx)}, {v(M_[0])}, {v(M_[1])}")
        P(f"v_max3_f32 {v(vMx)}, {v(vMx)}, {v(M_[2])}, {v(M_[3])}")
        for sg in range(4): P(f"v_sub_f32 {v(F[mt][sg])}, {v(M_[sg])}, {v(vMx)}")
        for sg in range(4): P(f"v_mul_f32 {v(F[mt][sg])}, s{sC1}, {v(F[mt][sg])}")
        for sg in range(4): P(f"v_exp_f32 {v(F[mt][sg])}, {v(F[mt][sg])}")
        P.nop(1)
        P(f"v_mul_f32 {v(vLs)}, {v(F[mt][0])}, {v(M_[0]+1)}")
        for sg in range(1, 4):
            P(f"v_fma_f32 {v(vLs)}, {v(F[mt][sg])}, {v(M_[sg]+1)}, {v(vLs)}")
        P(f"v_rcp_f32 {v(vLs)}, {v(vLs)}")
        P.nop(1)
        for sg in range(4): P(f"v_mul_f32 {v(F[mt][sg])}, {v(F[mt][sg])}, {v(vLs)}")
    P.stamp("F")
    for ku in range(4):
        st = ku % 2
        P(f"s_waitcnt vmcnt({24 if ku < 3 else 0})", f"dim group {ku} landed")
        for mt in range(2):
            for e in range(2):
                X = PO[st][mt]
                for r in range(4): P(f"v_mul_f32 {v(X[0][e]+r)}, {v(F[mt][0])}, {v(X[0][e]+r)}")
                for sg in range(1, 4):
                    for r in range(4): P(f"v_fma_f32 {v(X[0][e]+r)}, {v(F[mt][sg])}, {v(X[sg][e]+r)}, {v(X[0][e]+r)}")
            for e in range(2):
                for h2 in range(2):
                    P(f"v_cvt_pk_bf16_f32 {v(A[mt]+2*e+h2)}, {v(PO[st][mt][0][e]+2*h2)}, {v(PO[st][mt][0][e]+2*h2+1)}")
        def perm(i):
            sel = sSelE if (i & 1) == 0 else sSelO
            for p in range(4):
                P(f"v_perm_b32 {v(VT[i%2]+p)}, {v(W[st][2*p+1]+(i>>1))}, {v(W[st][2*p]+(i>>1))}, s{sel}")
        def mm(i):
            for mt in range(2):
                ar = f"a[{ACC[mt][i]}:{ACC[mt][i]+3}]"
                C = "0" if ku == 0 else ar
                P(f"v_mfma_f32_16x16x32_bf16 {ar}, {vr(A[mt],4)}, {vr(VT[i%2],4)}, {C}")
        perm(0)
        for i in range(8):
            if i + 1 < 8: perm(i + 1)
            else: P.nop(1)
            mm(i)
        if ku + 2 < 4: issue(ku + 2)
    P.stamp("mfma")
    P.nop(8)
    G = PO[0][0][0][0]
    G = (G + 3) // 4 * 4
    P(f"v_lshlrev_b32 {v(t1)}, 13, {v(vGp)}")
    P(f"v_lshlrev_b32 {v(t2)}, 5, {v(vC)}")
    P(f"v_add_u32 {v(t1)}, {v(t1)}, {v(t2)}")
    P(f"v_add_u32 {v(t2)}, 4096, {v(t1)}", "rows r=2,3")
    P(f"s_lshl_b32 s{sT}, s{sH}, 16")
    P(f"s_and_b32 s{sT2}, s2, 3")
    P(f"s_lshl_b32 s{sT2}, s{sT2}, 9")
    P(f"s_add_u32 s{sT}, s{sT}, s{sT2}")
    P(f"s_add_u32 s{sT}, s{sT}, {WS_OP}")
    P(f"s_add_u32 s{sT2}, s{sT}, 32768", "M tile 1: +16 rows")
    k = 0
    for mt in range(2):
        for r in range(4):
            base = G + 8 * k; k += 1
            for i in range(8):
                P(f"v_accvgpr_read_b32 {v(base+i)}, a{ACC[mt][i]+r}")
    k = 0
    for mt in range(2):
        for r in range(4):
            base = G + 8 * k; k += 1
            va_ = t1 if r < 2 else t2
            so = sT if mt == 0 else sT2
            for hlf in range(2):
                P(f"buffer_store_dwordx4 {vr(base+4*hlf,4)}, {v(va_)}, s[{SRD_S}:{SRD_S+3}], s{so} offen offset:{(r&1)*2048 + hlf*16}")
    assert G + 64 <= va.n
    P.stamp("end")
    def slot():
        P(f"s_mov_b32 s{sT}, s2"); return sT
    P.dump_stamps(SRD_S, slot, t1, t2, WS_PROF)
    P.label(f"{name}_end")
    P("s_endpgm")
    probs = verify(P, name)
    P.accum = ACCOFF
    return P, ACCOFF + 64, (100 if prof else NSGPR), 0, probs


def gen_k1b(name="qproj_kernel", nt=True, prof=False):
    P = Prog(prof)
    NTs = " nt" if nt else ""
    SRD_X, SRD_W, SRD_S = 12, 16, 20
    sWave, sT, sT2, sSelE, sSelO, sWoff, sXoff, sCB = 24, 25, 26, 27, 28, 29, 30, 31
    NSGPR = 40
    va = VAlloc(1)
    vLane = va(); vC = va(); vGp = va(); t1 = va(); t2 = va(); t3 = va()
    vWoff = [va() for j in range(8)]
    vXoff = [va(), va()]
    VT = [va(4, 4) for _ in range(2)]
    ACC = [[va(4, 4) for i in range(2)] for mt in range(2)]
    XA = [[va(4, 4) for mt in range(2)] for ku in range(4)]
    W = [[va() for j in range(8)] for ku in range(4)]
    R = [[va(2, 2) for i in range(2)] for w in range(4)]
    OUTR = va(2, 2)
    NVGPR = va.n
    P(f"s_cmp_ge_u32 s2, 128")
    P(f"s_cbranch_scc1 {name}_end")
    P.stamp("start")
    P(f"s_load_dwordx2 s[4:5], s[0:1], 0", "x")
    P(f"s_load_dwordx2 s[6:7], s[0:1], 24", "wq")
    P(f"s_load_dwordx2 s[8:9], s[0:1], 56", "ws")
    P(f"v_lshrrev_b32 {v(t1)}, 6, v0")
    P(f"v_and_b32 {v(vLane)}, 63, v0")
    P(f"v_readfirstlane_b32 s{sWave}, {v(t1)}")
    P(f"v_and_b32 {v(vC)}, 15, {v(vLane)}")
    P(f"v_lshrrev_b32 {v(vGp)}, 4, {v(vLane)}")
    P(f"v_lshlrev_b32 {v(t1)}, 16, {v(vGp)}", "g*8 rows*8192")
    P(f"v_lshlrev_b32 {v(t2)}, 2, {v(vC)}", "c'*4 bytes")
    P(f"v_add_u32 {v(vWoff[0])}, {v(t1)}, {v(t2)}")
    for j in range(1, 8):
        P(f"v_add_u32 {v(vWoff[j])}, {j*8192}, {v(vWoff[0])}")
    P(f"v_lshlrev_b32 {v(t1)}, 10, {v(vC)}")
    P(f"v_lshlrev_b32 {v(t2)}, 4, {v(vGp)}")
    P(f"v_add_u32 {v(vXoff[0])}, {v(t1)}, {v(t2)}")
    P(f"v_add_u32 {v(vXoff[1])}, 16384, {v(vXoff[0])}")
    P(f"s_and_b32 s{sT}, s2, 7")
    P(f"s_lshl_b32 s{sT}, s{sT}, 4")
    P(f"s_lshr_b32 s{sT2}, s2, 3")
    P(f"s_add_u32 s{sCB}, s{sT}, s{sT2}", "column block")
    P(f"s_waitcnt lgkmcnt(0)")
    P.stamp("kernarg")
    for (srd, lo, nb) in ((SRD_X, 4, 32768), (SRD_W, 6, 4194304), (SRD_S, 8, WS_USED)):
        P(f"s_mov_b32 s{srd}, s{lo}")
        P(f"s_mov_b32 s{srd+1}, s{lo+1}")
        P(f"s_mov_b32 s{srd+2}, {nb}")
        P(f"s_mov_b32 s{srd+3}, 0x00020000")
    P(f"s_lshl_b32 s{sT}, s{sCB}, 6", "cb*64 bytes")
    P(f"s_lshl_b32 s{sT2}, s{sWave}, 20")
    P(f"s_add_u32 s{sWoff}, s{sT}, s{sT2}")
    P(f"s_lshl_b32 s{sXoff}, s{sWave}, 8")
    P(f"s_mov_b32 s{sSelE}, 0x05040100")
    P(f"s_mov_b32 s{sSelO}, 0x07060302")
    for ku in range(4):
        for mt in range(2):
            P(f"buffer_load_dwordx4 {vr(XA[ku][mt],4)}, {v(vXoff[mt])}, s[{SRD_X}:{SRD_X+3}], s{sXoff} offen offset:{ku*64}")
    for ku in range(4):
        if ku: P(f"s_add_u32 s{sWoff}, s{sWoff}, 262144")
        for j in range(8):
            P(f"buffer_load_dword {v(W[ku][j])}, {v(vWoff[j])}, s[{SRD_W}:{SRD_W+3}], s{sWoff} offen{NTs}")
    P.stamp("issued")
    for ku in range(4):
        P(f"s_waitcnt vmcnt({(3-ku)*8})")
        for i in range(2):
            sel = sSelE if i == 0 else sSelO
            for p in range(4):
                P(f"v_perm_b32 {v(VT[i]+p)}, {v(W[ku][2*p+1])}, {v(W[ku][2*p])}, s{sel}")
        for i in range(2):
            for mt in range(2):
                C = "0" if ku == 0 else vr(ACC[mt][i], 4)
                P(f"v_mfma_f32_16x16x32_bf16 {vr(ACC[mt][i],4)}, {vr(XA[ku][mt],4)}, {vr(VT[i],4)}, {C}")
    P.stamp("mfma")
    P.nop(8)
    P(f"s_lshl_b32 s{sT}, s{sWave}, 12")
    P(f"v_lshlrev_b32 {v(t1)}, 4, {v(vLane)}")
    P(f"v_add_u32 {v(t3)}, s{sT}, {v(t1)}")
    for mt in range(2):
        for i in range(2):
            P(f"ds_write_b128 {v(t3)}, {vr(ACC[mt][i],4)} offset:{(mt*2+i)*1024}")
    P(f"s_waitcnt lgkmcnt(0)")
    P(f"s_barrier")
    P.stamp("barrier")
    P(f"s_lshr_b32 s{sT}, s{sWave}, 1")
    P(f"s_lshl_b32 s{sT}, s{sT}, 11", "mt*2048")
    P(f"s_and_b32 s{sT2}, s{sWave}, 1")
    P(f"s_lshl_b32 s{sT2}, s{sT2}, 3")
    P(f"s_add_u32 s{sT}, s{sT}, s{sT2}")
    P(f"v_add_u32 {v(t3)}, s{sT}, {v(t1)}")
    for w in range(4):
        for i in range(2):
            P(f"ds_read_b64 {vr(R[w][i],2)}, {v(t3)} offset:{w*4096 + i*1024}")
    P(f"s_waitcnt lgkmcnt(0)")
    for w in range(1, 4):
        for i in range(2):
            for rr in range(2):
                P(f"v_add_f32 {v(R[0][i]+rr)}, {v(R[0][i]+rr)}, {v(R[w][i]+rr)}")
    for rr in range(2):
        P(f"v_cvt_pk_bf16_f32 {v(OUTR+rr)}, {v(R[0][0]+rr)}, {v(R[0][1]+rr)}")
    P(f"v_lshlrev_b32 {v(t1)}, 15, {v(vGp)}")
    P(f"v_lshlrev_b32 {v(t2)}, 2, {v(vC)}")
    P(f"v_add_u32 {v(t1)}, {v(t1)}, {v(t2)}")
    P(f"v_add_u32 {v(t2)}, 8192, {v(t1)}")
    P(f"s_lshr_b32 s{sT}, s{sWave}, 1")
    P(f"s_lshl_b32 s{sT}, s{sT}, 17")
    P(f"s_and_b32 s{sT2}, s{sWave}, 1")
    P(f"s_lshl_b32 s{sT2}, s{sT2}, 14")
    P(f"s_add_u32 s{sT}, s{sT}, s{sT2}")
    P(f"s_lshl_b32 s{sT2}, s{sCB}, 6")
    P(f"s_add_u32 s{sT}, s{sT}, s{sT2}")
    P(f"buffer_store_dword {v(OUTR)}, {v(t1)}, s[{SRD_S}:{SRD_S+3}], s{sT} offen")
    P(f"buffer_store_dword {v(OUTR+1)}, {v(t2)}, s[{SRD_S}:{SRD_S+3}], s{sT} offen")
    P.stamp("end")
    def slot():
        P(f"s_lshl_b32 s{sT}, s2, 2"); P(f"s_add_u32 s{sT}, s{sT}, s{sWave}"); return sT
    P.dump_stamps(SRD_S, slot, t1, t2, WS_PROF)
    P.label(f"{name}_end")
    P("s_endpgm")
    probs = verify(P, name)
    return P, NVGPR, (100 if prof else NSGPR), 16384, probs

if __name__ == "__main__":
    P, nv, ns, lds, probs = gen_k2()
    print(P.text())
    print(nv, ns, lds)
    for p in probs: print(p)
```

```python
import sys
sys.path.insert(0, "dev")
import gen, mkasm
def kernels(WPW=4, NS=2, prof=None, k3b=1, k1b=1):
    ks = []
    if k1b:
        P, nv, ns, lds, pr = gen.gen_k1b("qproj_kernel", prof=(prof=="k1")); assert not pr, pr[:3]
        ks.append(("qproj_kernel", 128, 256, P, nv, ns, lds))
    else:
        P, nv, ns, lds, pr = gen.gen_k1("qproj_kernel", prof=(prof=="k1")); assert not pr, pr[:3]
        ks.append(("qproj_kernel", 32, 256, P, nv, ns, lds))
    P, nv, ns, lds, pr = gen.gen_k2("attn_kernel", WPW=WPW, NS=NS, nt=True, prof=(prof=="k2")); assert not pr, pr[:3]
    ks.append(("attn_kernel", 256, 64 * WPW, P, nv, ns, lds))
    if k3b:
        P, nv, ns, lds, pr = gen.gen_k3b("oproj_kernel", prof=(prof=="k3")); assert not pr, pr[:3]
        ks.append(("oproj_kernel", 128, 64, P, nv, ns, lds))
    else:
        P, nv, ns, lds, pr = gen.gen_k3("oproj_kernel", prof=(prof=="k3")); assert not pr, pr[:3]
        ks.append(("oproj_kernel", 128, 256, P, nv, ns, lds))
    P, nv, ns, lds, pr = gen.gen_k4("oreduce_kernel"); assert not pr, pr[:3]
    ks.append(("oreduce_kernel", 64, 64, P, nv, ns, lds))
    return ks, None
def build(path, **kw):
    ks, _ = kernels(**kw)
    mkasm.make(ks, path)
if __name__ == "__main__":
    path = sys.argv[1] if len(sys.argv) > 1 else "standalone__gqa_block_cached__sampling.s"
    build(path)
    print("wrote", path)
```

```python
import math, sys
sys.path.insert(0, "dev")
from asmlib import Prog, verify, v, vr, s, sr

B, SQ, D, HQ, HKV, SK, DH = 8, 4, 512, 32, 8, 4096, 128
WS_Q   = 0
WS_PO  = 0x40000
WS_PML = WS_PO + 256 * 8192
WS_OP  = WS_PML + 256 * 128
WS_PROF = 0x800000
WS_USED = 0x1000000
C1 = (DH ** -0.5) * math.log2(math.e)

def f32hex(x):
    import struct
    return "0x%08x" % struct.unpack("<I", struct.pack("<f", x))[0]

class VAlloc:
    def __init__(self, start=0): self.n = start
    def __call__(self, cnt=1, align=1):
        self.n = (self.n + align - 1) // align * align
        b = self.n; self.n += cnt; return b

def kernel_header(name):
    return f""".globl {name}
.p2align 8
.type {name},@function
{name}:"""

def kernel_desc(name, nvgpr, nsgpr, lds=0, accum=None):
    acc = (nvgpr + 3) // 4 * 4 if accum is None else accum
    return f""".p2align 6
.amdhsa_kernel {name}
  .amdhsa_next_free_vgpr {nvgpr}
  .amdhsa_next_free_sgpr {nsgpr}
  .amdhsa_accum_offset {acc}
  .amdhsa_group_segment_fixed_size 0
  .amdhsa_kernarg_size 64
  .amdhsa_user_sgpr_count 2
  .amdhsa_user_sgpr_kernarg_segment_ptr 1
  .amdhsa_system_sgpr_workgroup_id_x 1
.end_amdhsa_kernel"""

def gen_k2(name="attn_kernel", WPW=4, NS=2, nt=False, prof=False, pol=None):
    P = Prog(prof)
    KPW = 1024 // WPW
    U = KPW // 32
    assert U % NS == 0
    CHUNK = KPW * 256
    NTs = " nt" if nt else ""
    if pol is not None: NTs = (" " + pol) if pol else ""
    NW = 8 * (2 * NS - 1) + 0
    NW = 8 + 16 * (NS - 1)
    sKV = 4
    sWS = 8
    SRD_K, SRD_V, SRD_W = 12, 16, 20
    sWave, sPre, sCnt, sC1, sSelE, sSelO, sQoff, sG, sT, sT2, sOut = 24, 25, 26, 27, 28, 29, 30, 31, 32, 33, 34
    NSGPR = 40
    va = VAlloc(1)
    vLane = va(); vC = va(); vGp = va(); t1 = va(); t2 = va(); t3 = va()
    vKoff = [va(), va()]; vVoff = [va(), va()]; vQoff = va()
    vM = va(2, 2); vL = vM + 1
    vMn = va(); vAlpha = va(); vMc = va()
    Q = [va(4, 4) for _ in range(4)]
    ST = [va(4, 4) for _ in range(2)]
    PB = va(4, 4)
    VT = [va(4, 4) for _ in range(2)]
    O = [va(4, 4) for _ in range(8)]
    K = [[[va(4, 4) for kk in range(4)] for t in range(2)] for X in range(NS)]
    V = [[va(4, 4) for j in range(8)] for X in range(NS)]
    NVGPR = va.n

    P(f"s_cmp_ge_u32 s2, 256")
    P(f"s_cbranch_scc1 {name}_end")
    P.stamp("start")
    P(f"s_load_dwordx4 s[4:7], s[0:1], 8", "k_cache, v_cache")
    P(f"s_load_dwordx2 s[8:9], s[0:1], 56", "d_ws")
    P(f"v_lshrrev_b32 {v(t1)}, 6, v0", "wave id")
    P(f"v_and_b32 {v(vLane)}, 63, v0")
    P(f"v_readfirstlane_b32 s{sWave}, {v(t1)}")
    P(f"v_and_b32 {v(vC)}, 15, {v(vLane)}", "m / c")
    P(f"v_lshrrev_b32 {v(vGp)}, 4, {v(vLane)}", "g")
    P(f"v_and_b32 {v(t1)}, 3, {v(vC)}")
    P(f"v_lshlrev_b32 {v(t1)}, 10, {v(t1)}")
    P(f"v_lshrrev_b32 {v(t2)}, 2, {v(vC)}")
    P(f"v_lshlrev_b32 {v(t2)}, 8, {v(t2)}")
    P(f"v_add_u32 {v(t1)}, {v(t1)}, {v(t2)}")
    P(f"v_lshlrev_b32 {v(t3)}, 4, {v(vGp)}")
    P(f"v_add_u32 {v(vKoff[0])}, {v(t1)}, {v(t3)}")
    P(f"v_add_u32 {v(vKoff[1])}, 4096, {v(vKoff[0])}")
    P(f"v_lshlrev_b32 {v(vVoff[0])}, 4, {v(vLane)}")
    P(f"v_add_u32 {v(vVoff[1])}, 4096, {v(vVoff[0])}")
    P(f"v_and_b32 {v(t1)}, 3, {v(vC)}")
    P(f"v_lshlrev_b32 {v(t1)}, 13, {v(t1)}")
    P(f"v_add_u32 {v(t1)}, {v(t1)}, {v(t2)}")
    P(f"v_add_u32 {v(vQoff)}, {v(t1)}, {v(t3)}")
    P(f"s_lshr_b32 s{sG}, s2, 2", "group")
    P(f"s_and_b32 s{sT2}, s2, 3", "split")
    P(f"s_lshl_b32 s{sT}, s{sG}, 20")
    P(f"s_lshl_b32 s{sT2}, s{sT2}, 18")
    P(f"s_add_u32 s{sT}, s{sT}, s{sT2}")
    P(f"s_waitcnt lgkmcnt(0)")
    P.stamp("kernarg")
    P(f"s_lshl_b32 s{sT2}, s{sWave}, {int(math.log2(CHUNK))}")
    P(f"s_add_u32 s{sT}, s{sT}, s{sT2}", "byte offset of this wave's chunk")
    for (srd, lo) in ((SRD_K, 4), (SRD_V, 6)):
        P(f"s_add_u32 s{srd}, s{lo}, s{sT}")
        P(f"s_addc_u32 s{srd+1}, s{lo+1}, 0")
        P(f"s_mov_b32 s{srd+2}, {CHUNK}")
        P(f"s_mov_b32 s{srd+3}, 0x00020000")
    P(f"s_mov_b32 s{SRD_W}, s8")
    P(f"s_mov_b32 s{SRD_W+1}, s9")
    P(f"s_mov_b32 s{SRD_W+2}, {WS_USED}")
    P(f"s_mov_b32 s{SRD_W+3}, 0x00020000")
    P(f"s_lshr_b32 s{sT}, s{sG}, 3")
    P(f"s_lshl_b32 s{sT}, s{sT}, 15")
    P(f"s_and_b32 s{sT2}, s{sG}, 7")
    P(f"s_lshl_b32 s{sT2}, s{sT2}, 10")
    P(f"s_add_u32 s{sQoff}, s{sT}, s{sT2}", "q soffset = b*32768 + hkv*1024")
    for kk in range(4):
        P(f"buffer_load_dwordx4 {vr(Q[kk],4)}, {v(vQoff)}, s[{SRD_W}:{SRD_W+3}], s{sQoff} offen offset:{kk*64}", f"Q kk={kk}")
    def loadK(X, soff):
        for t in range(2):
            for kk in range(4):
                P(f"buffer_load_dwordx4 {vr(K[X][t][kk],4)}, {v(vKoff[t])}, s[{SRD_K}:{SRD_K+3}], {soff} offen offset:{kk*64}{NTs}")
    def loadV(X, soff):
        for j in range(8):
            P(f"buffer_load_dwordx4 {vr(V[X][j],4)}, {v(vVoff[j>>2])}, s[{SRD_V}:{SRD_V+3}], {soff} offen offset:{(j&3)*1024}{NTs}")
    P(f"s_mov_b32 s{sPre}, 0")
    P(f"s_mov_b32 s{sC1}, {f32hex(C1)}")
    P(f"s_mov_b32 s{sSelE}, 0x05040100")
    P(f"s_mov_b32 s{sSelO}, 0x07060302")
    for X in range(NS):
        loadK(X, f"s{sPre}"); loadV(X, f"s{sPre}")
        P(f"s_add_u32 s{sPre}, s{sPre}, 8192")
    P(f"v_mov_b32 {v(vM)}, 0xff800000", "m = -inf")
    P(f"v_mov_b32 {v(vL)}, 0")
    for i in range(8):
        for r in range(4):
            P(f"v_mov_b32 {v(O[i]+r)}, 0")
    P(f"s_mov_b32 s{sCnt}, {U // NS}")
    P.stamp("issued")

    def unit(X):
        P.comment(f"---- unit, stage {X}")
        P(f"s_waitcnt vmcnt({NW})", "K(u) (and older) landed")
        for kk in range(4):
            for t in range(2):
                C = "0" if kk == 0 else vr(ST[t], 4)
                P(f"v_mfma_f32_16x16x32_bf16 {vr(ST[t],4)}, {vr(K[X][t][kk],4)}, {vr(Q[kk],4)}, {C}")
        loadK(X, f"s{sPre}")
        a, b = ST[0], ST[1]
        P(f"v_max3_f32 {v(t1)}, {v(a)}, {v(a+1)}, {v(a+2)}")
        P(f"v_max3_f32 {v(t1)}, {v(t1)}, {v(a+3)}, {v(b)}")
        P(f"v_max3_f32 {v(t1)}, {v(t1)}, {v(b+1)}, {v(b+2)}")
        P(f"v_max_f32 {v(t1)}, {v(t1)}, {v(b+3)}")
        P(f"v_mov_b32 {v(t2)}, {v(t1)}")
        P.nop(2)
        P(f"v_permlane32_swap_b32 {v(t1)}, {v(t2)}")
        P(f"v_max_f32 {v(t1)}, {v(t1)}, {v(t2)}")
        P(f"v_mov_b32 {v(t2)}, {v(t1)}")
        P.nop(2)
        P(f"v_permlane16_swap_b32 {v(t1)}, {v(t2)}")
        P(f"v_max_f32 {v(t1)}, {v(t1)}, {v(t2)}")
        P(f"v_max_f32 {v(vMn)}, {v(vM)}, {v(t1)}", "m_new")
        P(f"v_sub_f32 {v(t2)}, {v(vM)}, {v(vMn)}")
        P(f"v_mul_f32 {v(t2)}, s{sC1}, {v(t2)}")
        P(f"v_exp_f32 {v(vAlpha)}, {v(t2)}")
        P(f"v_mul_f32 {v(vMc)}, s{sC1}, {v(vMn)}")
        P(f"v_mov_b32 {v(vM)}, {v(vMn)}")
        sreg = [a, a+1, a+2, a+3, b, b+1, b+2, b+3]
        for k in sreg:
            P(f"v_fma_f32 {v(k)}, {v(k)}, s{sC1}, -{v(vMc)}")
        for k in sreg:
            P(f"v_exp_f32 {v(k)}, {v(k)}")
        for i in range(8):
            for r in range(4):
                P(f"v_mul_f32 {v(O[i]+r)}, {v(O[i]+r)}, {v(vAlpha)}")
        P(f"v_add_f32 {v(t1)}, {v(a)}, {v(a+1)}")
        P(f"v_add_f32 {v(t2)}, {v(a+2)}, {v(a+3)}")
        P(f"v_add_f32 {v(t3)}, {v(b)}, {v(b+1)}")
        P(f"v_add_f32 {v(t1)}, {v(t1)}, {v(t2)}")
        P(f"v_add_f32 {v(t2)}, {v(b+2)}, {v(b+3)}")
        P(f"v_add_f32 {v(t3)}, {v(t3)}, {v(t2)}")
        P(f"v_add_f32 {v(t1)}, {v(t1)}, {v(t3)}")
        P(f"v_fma_f32 {v(vL)}, {v(vL)}, {v(vAlpha)}, {v(t1)}", "l = l*alpha + sum p")
        P(f"v_cvt_pk_bf16_f32 {v(PB)}, {v(a)}, {v(a+1)}")
        P(f"v_cvt_pk_bf16_f32 {v(PB+1)}, {v(a+2)}, {v(a+3)}")
        P(f"v_cvt_pk_bf16_f32 {v(PB+2)}, {v(b)}, {v(b+1)}")
        P(f"v_cvt_pk_bf16_f32 {v(PB+3)}, {v(b+2)}, {v(b+3)}")
        P(f"s_waitcnt vmcnt({NW})", "V(u) landed")
        def perm(i):
            sel = sSelE if (i & 1) == 0 else sSelO
            for p in range(4):
                P(f"v_perm_b32 {v(VT[i%2]+p)}, {v(V[X][2*p+1]+(i>>1))}, {v(V[X][2*p]+(i>>1))}, s{sel}")
        def pv(i):
            P(f"v_mfma_f32_16x16x32_bf16 {vr(O[i],4)}, {vr(VT[i%2],4)}, {vr(PB,4)}, {vr(O[i],4)}")
        perm(0)
        for i in range(7):
            perm(i + 1)
            pv(i)
        loadV(X, f"s{sPre}")
        pv(7)
        P(f"s_add_u32 s{sPre}, s{sPre}, 8192")

    P.label(f"{name}_loop")
    def body():
        for X in range(NS): unit(X)
        P(f"s_sub_u32 s{sCnt}, s{sCnt}, 1")
        P(f"s_cmp_lg_u32 s{sCnt}, 0")
        P(f"s_cbranch_scc1 {name}_loop")
    P.loop(body, U // NS)

    P.stamp("loop")
    P("s_waitcnt vmcnt(0)", "trailing (out-of-range, zero-returning) prefetches must land before their regs are reused")
    P(f"v_mov_b32 {v(t2)}, {v(vL)}")
    P.nop(2)
    P(f"v_permlane32_swap_b32 {v(vL)}, {v(t2)}")
    P(f"v_add_f32 {v(vL)}, {v(vL)}, {v(t2)}")
    P(f"v_mov_b32 {v(t2)}, {v(vL)}")
    P.nop(2)
    P(f"v_permlane16_swap_b32 {v(vL)}, {v(t2)}")
    P(f"v_add_f32 {v(vL)}, {v(vL)}, {v(t2)}")
    LDS_ML = WPW * 8192
    P(f"s_lshl_b32 s{sT}, s{sWave}, 13")
    P(f"v_lshlrev_b32 {v(t1)}, 4, {v(vLane)}")
    P(f"v_add_u32 {v(t3)}, s{sT}, {v(t1)}", "lds O write addr")
    for i in range(8):
        P(f"ds_write_b128 {v(t3)}, {vr(O[i],4)} offset:{i*1024}")
    P(f"s_lshl_b32 s{sT}, s{sWave}, 7")
    P(f"s_add_u32 s{sT}, s{sT}, {LDS_ML}")
    P(f"v_lshlrev_b32 {v(t2)}, 3, {v(vC)}")
    P(f"v_add_u32 {v(vMn)}, s{sT}, {v(t2)}")
    P(f"ds_write_b64 {v(vMn)}, {vr(vM,2)}")
    P(f"s_waitcnt lgkmcnt(0)")
    P(f"s_barrier")
    P.stamp("barrier")
    scr = K[0][0][0]
    MLr = [scr + 2*w for w in range(WPW)]
    P(f"v_add_u32 {v(vMn)}, {LDS_ML}, {v(t2)}", "lds ML read addr (c*8)")
    for w in range(WPW):
        P(f"ds_read_b64 {vr(MLr[w],2)}, {v(vMn)} offset:{w*128}")
    SPW = 8 // WPW
    P(f"s_lshl_b32 s{sT}, s{sWave}, {int(math.log2(SPW*1024))}")
    P(f"v_add_u32 {v(t3)}, s{sT}, {v(t1)}", "lds O read addr = lane*16 + wave*SPW*1024")
    Rb = K[0][0][0] + 2 * WPW
    Rb = (Rb + 3) // 4 * 4
    Rr = [[Rb + (w * SPW + e) * 4 for e in range(SPW)] for w in range(WPW)]
    assert Rb + WPW * SPW * 4 <= K[0][0][0] + 64 * NS
    if WPW + WPW * SPW > 15:
        P(f"s_waitcnt lgkmcnt(0)")
    for w in range(WPW):
        for e in range(SPW):
            P(f"ds_read_b128 {vr(Rr[w][e],4)}, {v(t3)} offset:{w*8192 + e*1024}")
    if WPW + WPW * SPW <= 15:
        P(f"s_waitcnt lgkmcnt({WPW*SPW})")
    P(f"v_max_f32 {v(vMn)}, {v(MLr[0])}, {v(MLr[1])}")
    for w in range(2, WPW):
        P(f"v_max_f32 {v(vMn)}, {v(vMn)}, {v(MLr[w])}")
    sc = ST[0]
    scs = [ST[0] + w if w < 4 else ST[1] + (w - 4) for w in range(WPW)]
    for w in range(WPW):
        P(f"v_sub_f32 {v(scs[w])}, {v(MLr[w])}, {v(vMn)}")
    for w in range(WPW):
        P(f"v_mul_f32 {v(scs[w])}, s{sC1}, {v(scs[w])}")
    for w in range(WPW):
        P(f"v_exp_f32 {v(scs[w])}, {v(scs[w])}")
    P.nop(1)
    P(f"v_mul_f32 {v(vAlpha)}, {v(scs[0])}, {v(MLr[0]+1)}")
    for w in range(1, WPW):
        P(f"v_fma_f32 {v(vAlpha)}, {v(scs[w])}, {v(MLr[w]+1)}, {v(vAlpha)}", "L* = sum sc_w*L_w")
    P(f"s_waitcnt lgkmcnt(0)")
    acc = [O[e] for e in range(SPW)]
    for e in range(SPW):
        for r in range(4):
            P(f"v_mul_f32 {v(acc[e]+r)}, {v(scs[0])}, {v(Rr[0][e]+r)}")
        for w in range(1, WPW):
            for r in range(4):
                P(f"v_fma_f32 {v(acc[e]+r)}, {v(scs[w])}, {v(Rr[w][e]+r)}, {v(acc[e]+r)}")
    P(f"v_lshrrev_b32 {v(t1)}, 2, {v(vC)}")
    P(f"v_lshlrev_b32 {v(t1)}, 16, {v(t1)}", "hh*65536")
    P(f"v_lshlrev_b32 {v(t2)}, 14, {v(vGp)}", "g*16384")
    P(f"v_add_u32 {v(t1)}, {v(t1)}, {v(t2)}")
    P(f"v_and_b32 {v(t2)}, 3, {v(vC)}")
    P(f"v_lshlrev_b32 {v(t2)}, 4, {v(t2)}")
    P(f"v_add_u32 {v(t1)}, {v(t1)}, {v(t2)}")
    P(f"s_and_b32 s{sT}, s{sG}, 7")
    P(f"s_lshl_b32 s{sOut}, s{sT}, 18", "hkv*262144")
    P(f"s_lshr_b32 s{sT}, s{sG}, 5")
    P(f"s_lshl_b32 s{sT}, s{sT}, 13", "mt*8192  (mt = b>>2 = group>>5)")
    P(f"s_add_u32 s{sOut}, s{sOut}, s{sT}")
    P(f"s_and_b32 s{sT}, s2, 3")
    P(f"s_lshl_b32 s{sT}, s{sT}, 11", "sg*2048")
    P(f"s_add_u32 s{sOut}, s{sOut}, s{sT}")
    P(f"s_lshl_b32 s{sT}, s{sWave}, 8", "wave*256")
    P(f"s_add_u32 s{sOut}, s{sOut}, s{sT}")
    P(f"s_lshr_b32 s{sT}, s{sG}, 3")
    P(f"s_and_b32 s{sT}, s{sT}, 3")
    P(f"s_lshl_b32 s{sT}, s{sT}, 6", "(b&3)*64")
    P(f"s_add_u32 s{sOut}, s{sOut}, s{sT}")
    P(f"s_add_u32 s{sOut}, s{sOut}, {WS_PO}")
    for e in range(SPW):
        P(f"buffer_store_dwordx4 {vr(acc[e],4)}, {v(t1)}, s[{SRD_W}:{SRD_W+3}], s{sOut} offen offset:{e*1024}")
    P(f"v_lshlrev_b32 {v(t2)}, 3, {v(vC)}", "c*8 again for the ML store")
    P(f"s_cmp_lg_u32 s{sWave}, 0")
    P(f"s_cbranch_scc1 {name}_skipml")
    P(f"v_mov_b32 {v(vM)}, {v(vMn)}")
    P(f"v_mov_b32 {v(vL)}, {v(vAlpha)}")
    P(f"s_lshl_b32 s{sOut}, s2, 7")
    P(f"s_add_u32 s{sOut}, s{sOut}, {WS_PML}")
    P(f"buffer_store_dwordx2 {vr(vM,2)}, {v(t2)}, s[{SRD_W}:{SRD_W+3}], s{sOut} offen")
    P.label(f"{name}_skipml")
    P.stamp("end")
    def slot():
        P(f"s_mul_i32 s{sT}, s2, {WPW}"); P(f"s_add_u32 s{sT}, s{sT}, s{sWave}"); return sT
    P.dump_stamps(SRD_W, slot, t1, t3, WS_PROF)
    P.label(f"{name}_end")
    P("s_endpgm")
    probs = verify(P, name)
    lds = WPW * 8192 + WPW * 128
    return P, NVGPR, (100 if prof else NSGPR), lds, probs


def gen_k1(name="qproj_kernel", nt=True, prof=False):
    P = Prog(prof)
    NTs = " nt" if nt else ""
    SRD_X, SRD_W, SRD_S = 12, 16, 20
    sWave, sT, sT2, sSelE, sSelO, sWoff, sXoff = 24, 25, 26, 27, 28, 29, 30
    NSGPR = 40
    va = VAlloc(1)
    vLane = va(); vC = va(); vGp = va(); t1 = va(); t2 = va(); t3 = va()
    vWoff = [va() for j in range(8)]
    vXoff = [va(), va()]
    VT = [va(4, 4) for _ in range(2)]
    ACC = [[va(4, 4) for i in range(8)] for mt in range(2)]
    XA = [[va(4, 4) for mt in range(2)] for ku in range(4)]
    W = [[va(4, 4) for j in range(8)] for ku in range(4)]
    NVGPR = va.n
    P(f"s_cmp_ge_u32 s2, 32")
    P(f"s_cbranch_scc1 {name}_end")
    P.stamp("start")
    P(f"s_load_dwordx2 s[4:5], s[0:1], 0", "x")
    P(f"s_load_dwordx2 s[6:7], s[0:1], 24", "wq")
    P(f"s_load_dwordx2 s[8:9], s[0:1], 56", "ws")
    P(f"v_lshrrev_b32 {v(t1)}, 6, v0")
    P(f"v_and_b32 {v(vLane)}, 63, v0")
    P(f"v_readfirstlane_b32 s{sWave}, {v(t1)}")
    P(f"v_and_b32 {v(vC)}, 15, {v(vLane)}")
    P(f"v_lshrrev_b32 {v(vGp)}, 4, {v(vLane)}")
    P(f"v_lshlrev_b32 {v(t1)}, 16, {v(vGp)}")
    P(f"v_lshlrev_b32 {v(t2)}, 4, {v(vC)}")
    P(f"v_add_u32 {v(vWoff[0])}, {v(t1)}, {v(t2)}")
    for j in range(1, 8):
        P(f"v_add_u32 {v(vWoff[j])}, {j*8192}, {v(vWoff[0])}")
    P(f"v_lshlrev_b32 {v(t1)}, 10, {v(vC)}")
    P(f"v_lshlrev_b32 {v(t2)}, 4, {v(vGp)}")
    P(f"v_add_u32 {v(vXoff[0])}, {v(t1)}, {v(t2)}")
    P(f"v_add_u32 {v(vXoff[1])}, 16384, {v(vXoff[0])}")
    P(f"s_waitcnt lgkmcnt(0)")
    P.stamp("kernarg")
    for (srd, lo, nb) in ((SRD_X, 4, 32768), (SRD_W, 6, 4194304), (SRD_S, 8, WS_USED)):
        P(f"s_mov_b32 s{srd}, s{lo}")
        P(f"s_mov_b32 s{srd+1}, s{lo+1}")
        P(f"s_mov_b32 s{srd+2}, {nb}")
        P(f"s_mov_b32 s{srd+3}, 0x00020000")
    P(f"s_lshl_b32 s{sT}, s2, 8")
    P(f"s_lshl_b32 s{sT2}, s{sWave}, 20")
    P(f"s_add_u32 s{sWoff}, s{sT}, s{sT2}")
    P(f"s_lshl_b32 s{sXoff}, s{sWave}, 8")
    P(f"s_mov_b32 s{sSelE}, 0x05040100")
    P(f"s_mov_b32 s{sSelO}, 0x07060302")
    for ku in range(4):
        for mt in range(2):
            P(f"buffer_load_dwordx4 {vr(XA[ku][mt],4)}, {v(vXoff[mt])}, s[{SRD_X}:{SRD_X+3}], s{sXoff} offen offset:{ku*64}")
    for ku in range(4):
        if ku: P(f"s_add_u32 s{sWoff}, s{sWoff}, 262144")
        for j in range(8):
            P(f"buffer_load_dwordx4 {vr(W[ku][j],4)}, {v(vWoff[j])}, s[{SRD_W}:{SRD_W+3}], s{sWoff} offen{NTs}")
    P.stamp("issued")
    for ku in range(4):
        P(f"s_waitcnt vmcnt({(3-ku)*8})")
        P.stamp(f"ku{ku}")
        def perm(i):
            sel = sSelE if (i & 1) == 0 else sSelO
            for p in range(4):
                P(f"v_perm_b32 {v(VT[i%2]+p)}, {v(W[ku][2*p+1]+(i>>1))}, {v(W[ku][2*p]+(i>>1))}, s{sel}")
        def mm(i):
            for mt in range(2):
                C = "0" if ku == 0 else vr(ACC[mt][i], 4)
                P(f"v_mfma_f32_16x16x32_bf16 {vr(ACC[mt][i],4)}, {vr(XA[ku][mt],4)}, {vr(VT[i%2],4)}, {C}")
        perm(0)
        for i in range(8):
            if i + 1 < 8: perm(i + 1)
            else: P.nop(1)
            mm(i)
    P.nop(8)
    P.stamp("mfma")
    P(f"s_lshl_b32 s{sT}, s{sWave}, 14")
    P(f"v_lshlrev_b32 {v(t1)}, 4, {v(vLane)}")
    P(f"v_add_u32 {v(t3)}, s{sT}, {v(t1)}")
    for mt in range(2):
        for i in range(8):
            P(f"ds_write_b128 {v(t3)}, {vr(ACC[mt][i],4)} offset:{(mt*8+i)*1024}")
        if mt == 0: P("s_waitcnt lgkmcnt(4)")
    P(f"s_waitcnt lgkmcnt(0)")
    P(f"s_barrier")
    P.stamp("barrier")
    P(f"s_lshr_b32 s{sT}, s{sWave}, 1")
    P(f"s_lshl_b32 s{sT}, s{sT}, 13", "mt*8192")
    P(f"s_and_b32 s{sT2}, s{sWave}, 1")
    P(f"s_lshl_b32 s{sT2}, s{sT2}, 3")
    P(f"s_add_u32 s{sT}, s{sT}, s{sT2}")
    P(f"v_add_u32 {v(t3)}, s{sT}, {v(t1)}")
    Rb = W[0][0]
    R = [[Rb + (w * 8 + i) * 2 for i in range(8)] for w in range(4)]
    for w in range(4):
        for i in range(8):
            P(f"ds_read_b64 {vr(R[w][i],2)}, {v(t3)} offset:{w*16384 + i*1024}")
        if w % 2 == 1 or True:
            P(f"s_waitcnt lgkmcnt(0)")
    for w in range(1, 4):
        for i in range(8):
            for rr in range(2):
                P(f"v_add_f32 {v(R[0][i]+rr)}, {v(R[0][i]+rr)}, {v(R[w][i]+rr)}")
    OUTR = [VT[0], VT[1]]
    for rr in range(2):
        for p in range(4):
            P(f"v_cvt_pk_bf16_f32 {v(OUTR[rr]+p)}, {v(R[0][2*p]+rr)}, {v(R[0][2*p+1]+rr)}")
    P(f"v_lshlrev_b32 {v(t1)}, 15, {v(vGp)}")
    P(f"v_lshlrev_b32 {v(t2)}, 4, {v(vC)}")
    P(f"v_add_u32 {v(t1)}, {v(t1)}, {v(t2)}")
    P(f"v_add_u32 {v(t2)}, 8192, {v(t1)}")
    P(f"s_lshr_b32 s{sT}, s{sWave}, 1")
    P(f"s_lshl_b32 s{sT}, s{sT}, 17", "mt*16*8192")
    P(f"s_and_b32 s{sT2}, s{sWave}, 1")
    P(f"s_lshl_b32 s{sT2}, s{sT2}, 14", "rp*2*8192")
    P(f"s_add_u32 s{sT}, s{sT}, s{sT2}")
    P(f"s_lshl_b32 s{sT2}, s2, 8")
    P(f"s_add_u32 s{sT}, s{sT}, s{sT2}")
    if WS_Q: P(f"s_add_u32 s{sT}, s{sT}, {WS_Q}")
    P(f"buffer_store_dwordx4 {vr(OUTR[0],4)}, {v(t1)}, s[{SRD_S}:{SRD_S+3}], s{sT} offen")
    P(f"buffer_store_dwordx4 {vr(OUTR[1],4)}, {v(t2)}, s[{SRD_S}:{SRD_S+3}], s{sT} offen")
    P.stamp("end")
    def slot():
        P(f"s_lshl_b32 s{sT}, s2, 2"); P(f"s_add_u32 s{sT}, s{sT}, s{sWave}"); return sT
    P.dump_stamps(SRD_S, slot, t1, t2, WS_PROF)
    P.label(f"{name}_end")
    P("s_endpgm")
    probs = verify(P, name)
    return P, NVGPR, (100 if prof else NSGPR), 65536, probs

def gen_k3(name="oproj_kernel", nt=True, prof=False):
    P = Prog(prof)
    NTs = " nt" if nt else ""
    SRD_O, SRD_S = 12, 16
    sWave, sT, sT2, sSelE, sSelO, sWo, sML, sC1 = 24, 25, 26, 27, 28, 29, 30, 31
    sPO = [32, 33, 34, 35]
    sH, sHH, sHKV = 36, 37, 38
    NSGPR = 44
    va = VAlloc(1)
    vLane = va(); vC = va(); vGp = va(); t1 = va(); t2 = va(); t3 = va()
    vWo = [va() for j in range(4)]
    vPO = [va(), va()]; vML = [va(), va()]
    VT = [va(4, 4) for _ in range(2)]
    A = [va(4, 4) for mt in range(2)]
    F = [va() for sg in range(4)]; vMx = va(); vLs = va()
    ACC = [[va(4, 4) for i in range(8)] for mt in range(2)]
    W = [va(4, 4) for j in range(8)]
    PO = [[[va(4, 4) for e in range(2)] for sg in range(4)] for mt in range(2)]
    ML = [[va(2, 2) for sg in range(4)] for mt in range(2)]
    NVGPR = va.n
    P(f"s_cmp_ge_u32 s2, 128")
    P(f"s_cbranch_scc1 {name}_end")
    P.stamp("start")
    P(f"s_load_dwordx2 s[4:5], s[0:1], 32", "wo")
    P(f"s_load_dwordx2 s[8:9], s[0:1], 56", "ws")
    P(f"v_lshrrev_b32 {v(t1)}, 6, v0")
    P(f"v_and_b32 {v(vLane)}, 63, v0")
    P(f"v_readfirstlane_b32 s{sWave}, {v(t1)}")
    P(f"v_and_b32 {v(vC)}, 15, {v(vLane)}")
    P(f"v_lshrrev_b32 {v(vGp)}, 4, {v(vLane)}")
    P(f"v_lshlrev_b32 {v(t1)}, 11, {v(vGp)}")
    P(f"v_lshlrev_b32 {v(t2)}, 4, {v(vC)}")
    P(f"v_add_u32 {v(vWo[0])}, {v(t1)}, {v(t2)}")
    for j in range(1, 4):
        P(f"v_add_u32 {v(vWo[j])}, {j*8192}, {v(vWo[0])}")
    P(f"v_lshrrev_b32 {v(t2)}, 2, {v(vC)}")
    P(f"v_lshlrev_b32 {v(t2)}, 18, {v(t2)}")
    P(f"v_add_u32 {v(t2)}, {v(t2)}, {v(t1)}")
    P(f"v_and_b32 {v(t3)}, 3, {v(vC)}")
    P(f"v_lshlrev_b32 {v(t3)}, 4, {v(t3)}")
    P(f"v_add_u32 {v(vPO[0])}, {v(t2)}, {v(t3)}")
    P(f"v_add_u32 {v(vPO[1])}, 0x100000, {v(vPO[0])}")
    P(f"v_lshrrev_b32 {v(t2)}, 2, {v(vC)}")
    P(f"v_lshlrev_b32 {v(t2)}, 12, {v(t2)}")
    P(f"v_lshrrev_b32 {v(t3)}, 1, {v(t3)}")
    P(f"v_add_u32 {v(vML[0])}, {v(t2)}, {v(t3)}")
    P(f"v_add_u32 {v(vML[1])}, 16384, {v(vML[0])}")
    P(f"s_lshr_b32 s{sH}, s2, 2")
    P(f"s_and_b32 s{sHH}, s{sH}, 3")
    P(f"s_lshr_b32 s{sHKV}, s{sH}, 2")
    P(f"s_waitcnt lgkmcnt(0)")
    P.stamp("kernarg")
    for (srd, lo, nb) in ((SRD_O, 4, 4194304), (SRD_S, 8, WS_USED)):
        P(f"s_mov_b32 s{srd}, s{lo}")
        P(f"s_mov_b32 s{srd+1}, s{lo+1}")
        P(f"s_mov_b32 s{srd+2}, {nb}")
        P(f"s_mov_b32 s{srd+3}, 0x00020000")
    P(f"s_lshl_b32 s{sT}, s{sH}, 17")
    P(f"s_lshl_b32 s{sT2}, s{sWave}, 15")
    P(f"s_add_u32 s{sWo}, s{sT}, s{sT2}")
    P(f"s_and_b32 s{sT2}, s2, 3")
    P(f"s_lshl_b32 s{sT2}, s{sT2}, 8")
    P(f"s_add_u32 s{sWo}, s{sWo}, s{sT2}")
    for j in range(8):
        P(f"buffer_load_dwordx4 {vr(W[j],4)}, {v(vWo[j&3])}, s[{SRD_O}:{SRD_O+3}], s{sWo} offen offset:{(j>>2)*1024}{NTs}")
    P(f"s_lshl_b32 s{sT}, s{sHKV}, 9")
    P(f"s_lshl_b32 s{sT2}, s{sHH}, 5")
    P(f"s_add_u32 s{sML}, s{sT}, s{sT2}")
    P(f"s_add_u32 s{sML}, s{sML}, {WS_PML}")
    for mt in range(2):
        for sg in range(4):
            P(f"buffer_load_dwordx2 {vr(ML[mt][sg],2)}, {v(vML[mt])}, s[{SRD_S}:{SRD_S+3}], s{sML} offen offset:{sg*128}")
    P(f"s_lshl_b32 s{sT}, s{sHKV}, 18")
    P(f"s_lshl_b32 s{sT2}, s{sHH}, 16")
    P(f"s_add_u32 s{sT}, s{sT}, s{sT2}")
    P(f"s_lshl_b32 s{sT2}, s{sWave}, 14")
    P(f"s_add_u32 s{sT}, s{sT}, s{sT2}")
    for q4 in range(4):
        P(f"s_add_u32 s{sPO[q4]}, s{sT}, {WS_PO + (q4 >> 1) * 8192 + (q4 & 1) * 4096}")
    P(f"v_lshlrev_b32 {v(vPO[0])}, 4, {v(vLane)}")
    for mt in range(2):
        for sg in range(4):
            for e in range(2):
                P(f"buffer_load_dwordx4 {vr(PO[mt][sg][e],4)}, {v(vPO[0])}, s[{SRD_S}:{SRD_S+3}], s{sPO[mt*2 + (sg >> 1)]} offen offset:{(sg & 1) * 2048 + e * 1024}")
    P(f"s_mov_b32 s{sC1}, {f32hex(C1)}")
    P(f"s_mov_b32 s{sSelE}, 0x05040100")
    P(f"s_mov_b32 s{sSelO}, 0x07060302")
    P.stamp("issued")
    P(f"s_waitcnt vmcnt(16)", "wo + ML landed")
    P.stamp("ML")
    for mt in range(2):
        M_ = [ML[mt][sg] for sg in range(4)]
        P(f"v_max_f32 {v(vMx)}, {v(M_[0])}, {v(M_[1])}")
        P(f"v_max3_f32 {v(vMx)}, {v(vMx)}, {v(M_[2])}, {v(M_[3])}")
        for sg in range(4):
            P(f"v_sub_f32 {v(F[sg])}, {v(M_[sg])}, {v(vMx)}")
        for sg in range(4):
            P(f"v_mul_f32 {v(F[sg])}, s{sC1}, {v(F[sg])}")
        for sg in range(4):
            P(f"v_exp_f32 {v(F[sg])}, {v(F[sg])}")
        P.nop(1)
        P(f"v_mul_f32 {v(vLs)}, {v(F[0])}, {v(M_[0]+1)}")
        for sg in range(1, 4):
            P(f"v_fma_f32 {v(vLs)}, {v(F[sg])}, {v(M_[sg]+1)}, {v(vLs)}")
        P(f"v_rcp_f32 {v(vLs)}, {v(vLs)}")
        P.nop(1)
        for sg in range(4):
            P(f"v_mul_f32 {v(F[sg])}, {v(F[sg])}, {v(vLs)}")
        P(f"s_waitcnt vmcnt({8 if mt == 0 else 0})", "partial O of this M tile landed")
        for e in range(2):
            for r in range(4):
                P(f"v_mul_f32 {v(PO[mt][0][e]+r)}, {v(F[0])}, {v(PO[mt][0][e]+r)}")
            for sg in range(1, 4):
                for r in range(4):
                    P(f"v_fma_f32 {v(PO[mt][0][e]+r)}, {v(F[sg])}, {v(PO[mt][sg][e]+r)}, {v(PO[mt][0][e]+r)}")
        for e in range(2):
            for h2 in range(2):
                P(f"v_cvt_pk_bf16_f32 {v(A[mt]+2*e+h2)}, {v(PO[mt][0][e]+2*h2)}, {v(PO[mt][0][e]+2*h2+1)}")
    P.stamp("combined")
    P(f"s_waitcnt vmcnt(0)", "wo tile landed")
    P.stamp("wo")
    def perm(i):
        sel = sSelE if (i & 1) == 0 else sSelO
        for p in range(4):
            P(f"v_perm_b32 {v(VT[i%2]+p)}, {v(W[2*p+1]+(i>>1))}, {v(W[2*p]+(i>>1))}, s{sel}")
    def mm(i):
        for mt in range(2):
            P(f"v_mfma_f32_16x16x32_bf16 {vr(ACC[mt][i],4)}, {vr(A[mt],4)}, {vr(VT[i%2],4)}, 0")
    perm(0)
    for i in range(8):
        if i + 1 < 8: perm(i + 1)
        else: P.nop(1)
        mm(i)
    P.nop(8)
    P.stamp("mfma")
    P(f"s_lshl_b32 s{sT}, s{sWave}, 14")
    P(f"v_lshlrev_b32 {v(t1)}, 4, {v(vLane)}")
    P(f"v_add_u32 {v(t3)}, s{sT}, {v(t1)}")
    for mt in range(2):
        for i in range(8):
            P(f"ds_write_b128 {v(t3)}, {vr(ACC[mt][i],4)} offset:{(mt*8+i)*1024}")
        if mt == 0: P("s_waitcnt lgkmcnt(4)")
    P(f"s_waitcnt lgkmcnt(0)")
    P(f"s_barrier")
    P.stamp("barrier")
    P(f"s_lshr_b32 s{sT}, s{sWave}, 1")
    P(f"s_lshl_b32 s{sT}, s{sT}, 13", "mt*8192")
    P(f"s_and_b32 s{sT2}, s{sWave}, 1")
    P(f"s_lshl_b32 s{sT2}, s{sT2}, 3")
    P(f"s_add_u32 s{sT}, s{sT}, s{sT2}")
    P(f"v_add_u32 {v(t3)}, s{sT}, {v(t1)}")
    Rb = PO[0][0][0]
    R = [[Rb + (w * 8 + i) * 2 for i in range(8)] for w in range(4)]
    for w in range(4):
        for i in range(8):
            P(f"ds_read_b64 {vr(R[w][i],2)}, {v(t3)} offset:{w*16384 + i*1024}")
        P(f"s_waitcnt lgkmcnt(0)")
    for w in range(1, 4):
        for i in range(8):
            for rr in range(2):
                P(f"v_add_f32 {v(R[0][i]+rr)}, {v(R[0][i]+rr)}, {v(R[w][i]+rr)}")
    OUT = [ACC[0][0], ACC[0][2]]
    assert ACC[0][1] == ACC[0][0] + 4 and ACC[0][3] == ACC[0][2] + 4
    for rr in range(2):
        for i in range(8):
            P(f"v_mov_b32 {v(OUT[rr]+i)}, {v(R[0][i]+rr)}")
    P(f"v_lshlrev_b32 {v(t1)}, 13, {v(vGp)}", "g*4*2048")
    P(f"v_lshlrev_b32 {v(t2)}, 5, {v(vC)}")
    P(f"v_add_u32 {v(t1)}, {v(t1)}, {v(t2)}")
    P(f"s_lshr_b32 s{sT}, s{sWave}, 1")
    P(f"s_lshl_b32 s{sT}, s{sT}, 15", "mt*16*2048")
    P(f"s_and_b32 s{sT2}, s{sWave}, 1")
    P(f"s_lshl_b32 s{sT2}, s{sT2}, 12", "rp*2*2048")
    P(f"s_add_u32 s{sT}, s{sT}, s{sT2}")
    P(f"s_lshl_b32 s{sT2}, s{sH}, 16")
    P(f"s_add_u32 s{sT}, s{sT}, s{sT2}")
    P(f"s_and_b32 s{sT2}, s2, 3")
    P(f"s_lshl_b32 s{sT2}, s{sT2}, 9", "cb*128*4")
    P(f"s_add_u32 s{sT}, s{sT}, s{sT2}")
    P(f"s_add_u32 s{sT}, s{sT}, {WS_OP}")
    for rr in range(2):
        for hlf in range(2):
            P(f"buffer_store_dwordx4 {vr(OUT[rr]+4*hlf,4)}, {v(t1)}, s[{SRD_S}:{SRD_S+3}], s{sT} offen offset:{rr*2048 + hlf*16}")
    P.stamp("end")
    def slot():
        P(f"s_lshl_b32 s{sT}, s2, 2"); P(f"s_add_u32 s{sT}, s{sT}, s{sWave}"); return sT
    P.dump_stamps(SRD_S, slot, t1, t2, WS_PROF)
    P.label(f"{name}_end")
    P("s_endpgm")
    probs = verify(P, name)
    return P, NVGPR, (100 if prof else NSGPR), 65536, probs

def gen_k4(name="oreduce_kernel"):
    P = Prog()
    SRD_S, SRD_O = 12, 16
    va = VAlloc(1)
    t1 = va(); t2 = va()
    R = [va(4, 4) for h in range(32)]
    OUTR = va(2, 2)
    NVGPR = va.n
    P(f"s_cmp_ge_u32 s2, 64")
    P(f"s_cbranch_scc1 {name}_end")
    P(f"s_load_dwordx4 s[4:7], s[0:1], 40", "d_out, d_debug")
    P(f"s_load_dwordx2 s[8:9], s[0:1], 56", "ws")
    P(f"s_lshl_b32 s3, s2, 6")
    P(f"v_add_u32 {v(t1)}, s3, v0", "thread index")
    P(f"v_lshlrev_b32 {v(t2)}, 3, {v(t1)}", "out byte offset (4 bf16)")
    P(f"v_lshlrev_b32 {v(t1)}, 4, {v(t1)}", "fp32 byte offset")
    P(f"s_waitcnt lgkmcnt(0)")
    P(f"s_mov_b32 s{SRD_S}, s8"); P(f"s_mov_b32 s{SRD_S+1}, s9"); P(f"s_mov_b32 s{SRD_S+2}, {WS_USED}"); P(f"s_mov_b32 s{SRD_S+3}, 0x00020000")
    P(f"s_mov_b32 s{SRD_O}, s4"); P(f"s_mov_b32 s{SRD_O+1}, s5"); P(f"s_mov_b32 s{SRD_O+2}, 32768"); P(f"s_mov_b32 s{SRD_O+3}, 0x00020000")
    P(f"s_mov_b32 s20, {WS_OP}")
    for h in range(32):
        if h: P(f"s_add_u32 s20, s20, 65536")
        P(f"buffer_load_dwordx4 {vr(R[h],4)}, {v(t1)}, s[{SRD_S}:{SRD_S+3}], s20 offen")
    for h in range(1, 32):
        P(f"s_waitcnt vmcnt({31-h})")
        for r in range(4):
            P(f"v_add_f32 {v(R[0]+r)}, {v(R[0]+r)}, {v(R[h]+r)}")
    P(f"v_cvt_pk_bf16_f32 {v(OUTR)}, {v(R[0])}, {v(R[0]+1)}")
    P(f"v_cvt_pk_bf16_f32 {v(OUTR+1)}, {v(R[0]+2)}, {v(R[0]+3)}")
    P(f"buffer_store_dwordx2 {vr(OUTR,2)}, {v(t2)}, s[{SRD_O}:{SRD_O+3}], 0 offen")
    P.label(f"{name}_end")
    P("s_endpgm")
    probs = verify(P, name)
    return P, NVGPR, 32, 0, probs


def gen_k3b(name="oproj_kernel", nt=True, prof=False):
    P = Prog(prof)
    NTs = " nt" if nt else ""
    SRD_O, SRD_S = 12, 16
    sT, sT2, sSelE, sSelO, sWo, sML, sC1 = 25, 26, 27, 28, 29, 30, 31
    sPO = 32
    sH, sHH, sHKV = 40, 41, 42
    NSGPR = 48
    va = VAlloc(1)
    vC = va(); vGp = va(); t1 = va(); t2 = va(); t3 = va()
    vWo = [va() for j in range(4)]
    vPO = va(); vML = [va(), va()]
    VT = [va(4, 4) for _ in range(2)]
    A = [va(4, 4) for mt in range(2)]
    F = [[va() for sg in range(4)] for mt in range(2)]; vMx = va(); vLs = va()
    ML = [[va(2, 2) for sg in range(4)] for mt in range(2)]
    ACC = [[(mt * 8 + i) * 4 for i in range(8)] for mt in range(2)]
    W = [[va(4, 4) for j in range(8)] for st in range(2)]
    PO = [[[[va(4, 4) for e in range(2)] for sg in range(4)] for mt in range(2)] for st in range(2)]
    NVGPR = va.n
    ACCOFF = (NVGPR + 3) // 4 * 4
    P(f"s_cmp_ge_u32 s2, 128")
    P(f"s_cbranch_scc1 {name}_end")
    P.stamp("start")
    P(f"s_load_dwordx2 s[4:5], s[0:1], 32", "wo")
    P(f"s_load_dwordx2 s[8:9], s[0:1], 56", "ws")
    P(f"v_and_b32 {v(vC)}, 15, v0")
    P(f"v_lshrrev_b32 {v(vGp)}, 4, v0")
    P(f"v_lshlrev_b32 {v(t1)}, 11, {v(vGp)}")
    P(f"v_lshlrev_b32 {v(t2)}, 4, {v(vC)}")
    P(f"v_add_u32 {v(vWo[0])}, {v(t1)}, {v(t2)}")
    for j in range(1, 4):
        P(f"v_add_u32 {v(vWo[j])}, {j*8192}, {v(vWo[0])}")
    P(f"v_lshlrev_b32 {v(vPO)}, 4, v0")
    P(f"v_lshrrev_b32 {v(t2)}, 2, {v(vC)}")
    P(f"v_lshlrev_b32 {v(t2)}, 12, {v(t2)}")
    P(f"v_and_b32 {v(t3)}, 3, {v(vC)}")
    P(f"v_lshlrev_b32 {v(t3)}, 3, {v(t3)}")
    P(f"v_add_u32 {v(vML[0])}, {v(t2)}, {v(t3)}")
    P(f"v_add_u32 {v(vML[1])}, 16384, {v(vML[0])}")
    P(f"s_lshr_b32 s{sH}, s2, 2")
    P(f"s_and_b32 s{sHH}, s{sH}, 3")
    P(f"s_lshr_b32 s{sHKV}, s{sH}, 2")
    P(f"s_waitcnt lgkmcnt(0)")
    P.stamp("kernarg")
    for (srd, lo, nb) in ((SRD_O, 4, 4194304), (SRD_S, 8, WS_USED)):
        P(f"s_mov_b32 s{srd}, s{lo}")
        P(f"s_mov_b32 s{srd+1}, s{lo+1}")
        P(f"s_mov_b32 s{srd+2}, {nb}")
        P(f"s_mov_b32 s{srd+3}, 0x00020000")
    P(f"s_lshl_b32 s{sT}, s{sHKV}, 9")
    P(f"s_lshl_b32 s{sT2}, s{sHH}, 5")
    P(f"s_add_u32 s{sML}, s{sT}, s{sT2}")
    P(f"s_add_u32 s{sML}, s{sML}, {WS_PML}")
    for mt in range(2):
        for sg in range(4):
            P(f"buffer_load_dwordx2 {vr(ML[mt][sg],2)}, {v(vML[mt])}, s[{SRD_S}:{SRD_S+3}], s{sML} offen offset:{sg*128}")
    P(f"s_lshl_b32 s{sT}, s{sHKV}, 18")
    P(f"s_lshl_b32 s{sT2}, s{sHH}, 16")
    P(f"s_add_u32 s{sPO}, s{sT}, s{sT2}")
    P(f"s_add_u32 s{sPO}, s{sPO}, {WS_PO}")
    P(f"s_lshl_b32 s{sWo}, s{sH}, 17")
    P(f"s_and_b32 s{sT2}, s2, 3")
    P(f"s_lshl_b32 s{sT2}, s{sT2}, 8")
    P(f"s_add_u32 s{sWo}, s{sWo}, s{sT2}")
    P(f"s_mov_b32 s{sC1}, {f32hex(C1)}")
    P(f"s_mov_b32 s{sSelE}, 0x05040100")
    P(f"s_mov_b32 s{sSelO}, 0x07060302")
    def issue(ku):
        st = ku % 2
        for j in range(8):
            P(f"buffer_load_dwordx4 {vr(W[st][j],4)}, {v(vWo[j&3])}, s[{SRD_O}:{SRD_O+3}], s{sWo} offen offset:{(j>>2)*1024}{NTs}")
        P(f"s_add_u32 s{sWo}, s{sWo}, 32768")
        for q4 in range(4):
            P(f"s_add_u32 s{sPO+1+q4}, s{sPO}, {(q4 >> 1) * 8192 + (q4 & 1) * 4096}")
        for mt in range(2):
            for sg in range(4):
                for e in range(2):
                    P(f"buffer_load_dwordx4 {vr(PO[st][mt][sg][e],4)}, {v(vPO)}, s[{SRD_S}:{SRD_S+3}], s{sPO+1+mt*2+(sg>>1)} offen offset:{(sg & 1) * 2048 + e * 1024}")
        P(f"s_add_u32 s{sPO}, s{sPO}, 16384")
    issue(0); issue(1)
    P.stamp("issued")
    P(f"s_waitcnt vmcnt(48)", "ML landed")
    for mt in range(2):
        M_ = [ML[mt][sg] for sg in range(4)]
        P(f"v_max_f32 {v(vMx)}, {v(M_[0])}, {v(M_[1])}")
        P(f"v_max3_f32 {v(vMx)}, {v(vMx)}, {v(M_[2])}, {v(M_[3])}")
        for sg in range(4): P(f"v_sub_f32 {v(F[mt][sg])}, {v(M_[sg])}, {v(vMx)}")
        for sg in range(4): P(f"v_mul_f32 {v(F[mt][sg])}, s{sC1}, {v(F[mt][sg])}")
        for sg in range(4): P(f"v_exp_f32 {v(F[mt][sg])}, {v(F[mt][sg])}")
        P.nop(1)
        P(f"v_mul_f32 {v(vLs)}, {v(F[mt][0])}, {v(M_[0]+1)}")
        for sg in range(1, 4):
            P(f"v_fma_f32 {v(vLs)}, {v(F[mt][sg])}, {v(M_[sg]+1)}, {v(vLs)}")
        P(f"v_rcp_f32 {v(vLs)}, {v(vLs)}")
        P.nop(1)
        for sg in range(4): P(f"v_mul_f32 {v(F[mt][sg])}, {v(F[mt][sg])}, {v(vLs)}")
    P.stamp("F")
    for ku in range(4):
        st = ku % 2
        P(f"s_waitcnt vmcnt({24 if ku < 3 else 0})", f"dim group {ku} landed")
        for mt in range(2):
            for e in range(2):
                X = PO[st][mt]
                for r in range(4): P(f"v_mul_f32 {v(X[0][e]+r)}, {v(F[mt][0])}, {v(X[0][e]+r)}")
                for sg in range(1, 4):
                    for r in range(4): P(f"v_fma_f32 {v(X[0][e]+r)}, {v(F[mt][sg])}, {v(X[sg][e]+r)}, {v(X[0][e]+r)}")
            for e in range(2):
                for h2 in range(2):
                    P(f"v_cvt_pk_bf16_f32 {v(A[mt]+2*e+h2)}, {v(PO[st][mt][0][e]+2*h2)}, {v(PO[st][mt][0][e]+2*h2+1)}")
        def perm(i):
            sel = sSelE if (i & 1) == 0 else sSelO
            for p in range(4):
                P(f"v_perm_b32 {v(VT[i%2]+p)}, {v(W[st][2*p+1]+(i>>1))}, {v(W[st][2*p]+(i>>1))}, s{sel}")
        def mm(i):
            for mt in range(2):
                ar = f"a[{ACC[mt][i]}:{ACC[mt][i]+3}]"
                C = "0" if ku == 0 else ar
                P(f"v_mfma_f32_16x16x32_bf16 {ar}, {vr(A[mt],4)}, {vr(VT[i%2],4)}, {C}")
        perm(0)
        for i in range(8):
            if i + 1 < 8: perm(i + 1)
            else: P.nop(1)
            mm(i)
        if ku + 2 < 4: issue(ku + 2)
    P.stamp("mfma")
    P.nop(8)
    G = PO[0][0][0][0]
    G = (G + 3) // 4 * 4
    P(f"v_lshlrev_b32 {v(t1)}, 13, {v(vGp)}")
    P(f"v_lshlrev_b32 {v(t2)}, 5, {v(vC)}")
    P(f"v_add_u32 {v(t1)}, {v(t1)}, {v(t2)}")
    P(f"v_add_u32 {v(t2)}, 4096, {v(t1)}", "rows r=2,3")
    P(f"s_lshl_b32 s{sT}, s{sH}, 16")
    P(f"s_and_b32 s{sT2}, s2, 3")
    P(f"s_lshl_b32 s{sT2}, s{sT2}, 9")
    P(f"s_add_u32 s{sT}, s{sT}, s{sT2}")
    P(f"s_add_u32 s{sT}, s{sT}, {WS_OP}")
    P(f"s_add_u32 s{sT2}, s{sT}, 32768", "M tile 1: +16 rows")
    k = 0
    for mt in range(2):
        for r in range(4):
            base = G + 8 * k; k += 1
            for i in range(8):
                P(f"v_accvgpr_read_b32 {v(base+i)}, a{ACC[mt][i]+r}")
    k = 0
    for mt in range(2):
        for r in range(4):
            base = G + 8 * k; k += 1
            va_ = t1 if r < 2 else t2
            so = sT if mt == 0 else sT2
            for hlf in range(2):
                P(f"buffer_store_dwordx4 {vr(base+4*hlf,4)}, {v(va_)}, s[{SRD_S}:{SRD_S+3}], s{so} offen offset:{(r&1)*2048 + hlf*16}")
    assert G + 64 <= va.n
    P.stamp("end")
    def slot():
        P(f"s_mov_b32 s{sT}, s2"); return sT
    P.dump_stamps(SRD_S, slot, t1, t2, WS_PROF)
    P.label(f"{name}_end")
    P("s_endpgm")
    probs = verify(P, name)
    P.accum = ACCOFF
    return P, ACCOFF + 64, (100 if prof else NSGPR), 0, probs


def gen_k1b(name="qproj_kernel", nt=True, prof=False):
    P = Prog(prof)
    NTs = " nt" if nt else ""
    SRD_X, SRD_W, SRD_S = 12, 16, 20
    sWave, sT, sT2, sSelE, sSelO, sWoff, sXoff, sCB = 24, 25, 26, 27, 28, 29, 30, 31
    NSGPR = 40
    va = VAlloc(1)
    vLane = va(); vC = va(); vGp = va(); t1 = va(); t2 = va(); t3 = va()
    vWoff = [va() for j in range(8)]
    vXoff = [va(), va()]
    VT = [va(4, 4) for _ in range(2)]
    ACC = [[va(4, 4) for i in range(2)] for mt in range(2)]
    XA = [[va(4, 4) for mt in range(2)] for ku in range(4)]
    W = [[va() for j in range(8)] for ku in range(4)]
    R = [[va(2, 2) for i in range(2)] for w in range(4)]
    OUTR = va(2, 2)
    NVGPR = va.n
    P(f"s_cmp_ge_u32 s2, 128")
    P(f"s_cbranch_scc1 {name}_end")
    P.stamp("start")
    P(f"s_load_dwordx2 s[4:5], s[0:1], 0", "x")
    P(f"s_load_dwordx2 s[6:7], s[0:1], 24", "wq")
    P(f"s_load_dwordx2 s[8:9], s[0:1], 56", "ws")
    P(f"v_lshrrev_b32 {v(t1)}, 6, v0")
    P(f"v_and_b32 {v(vLane)}, 63, v0")
    P(f"v_readfirstlane_b32 s{sWave}, {v(t1)}")
    P(f"v_and_b32 {v(vC)}, 15, {v(vLane)}")
    P(f"v_lshrrev_b32 {v(vGp)}, 4, {v(vLane)}")
    P(f"v_lshlrev_b32 {v(t1)}, 16, {v(vGp)}", "g*8 rows*8192")
    P(f"v_lshlrev_b32 {v(t2)}, 2, {v(vC)}", "c'*4 bytes")
    P(f"v_add_u32 {v(vWoff[0])}, {v(t1)}, {v(t2)}")
    for j in range(1, 8):
        P(f"v_add_u32 {v(vWoff[j])}, {j*8192}, {v(vWoff[0])}")
    P(f"v_lshlrev_b32 {v(t1)}, 10, {v(vC)}")
    P(f"v_lshlrev_b32 {v(t2)}, 4, {v(vGp)}")
    P(f"v_add_u32 {v(vXoff[0])}, {v(t1)}, {v(t2)}")
    P(f"v_add_u32 {v(vXoff[1])}, 16384, {v(vXoff[0])}")
    P(f"s_and_b32 s{sT}, s2, 7")
    P(f"s_lshl_b32 s{sT}, s{sT}, 4")
    P(f"s_lshr_b32 s{sT2}, s2, 3")
    P(f"s_add_u32 s{sCB}, s{sT}, s{sT2}", "column block")
    P(f"s_waitcnt lgkmcnt(0)")
    P.stamp("kernarg")
    for (srd, lo, nb) in ((SRD_X, 4, 32768), (SRD_W, 6, 4194304), (SRD_S, 8, WS_USED)):
        P(f"s_mov_b32 s{srd}, s{lo}")
        P(f"s_mov_b32 s{srd+1}, s{lo+1}")
        P(f"s_mov_b32 s{srd+2}, {nb}")
        P(f"s_mov_b32 s{srd+3}, 0x00020000")
    P(f"s_lshl_b32 s{sT}, s{sCB}, 6", "cb*64 bytes")
    P(f"s_lshl_b32 s{sT2}, s{sWave}, 20")
    P(f"s_add_u32 s{sWoff}, s{sT}, s{sT2}")
    P(f"s_lshl_b32 s{sXoff}, s{sWave}, 8")
    P(f"s_mov_b32 s{sSelE}, 0x05040100")
    P(f"s_mov_b32 s{sSelO}, 0x07060302")
    for ku in range(4):
        for mt in range(2):
            P(f"buffer_load_dwordx4 {vr(XA[ku][mt],4)}, {v(vXoff[mt])}, s[{SRD_X}:{SRD_X+3}], s{sXoff} offen offset:{ku*64}")
    for ku in range(4):
        if ku: P(f"s_add_u32 s{sWoff}, s{sWoff}, 262144")
        for j in range(8):
            P(f"buffer_load_dword {v(W[ku][j])}, {v(vWoff[j])}, s[{SRD_W}:{SRD_W+3}], s{sWoff} offen{NTs}")
    P.stamp("issued")
    for ku in range(4):
        P(f"s_waitcnt vmcnt({(3-ku)*8})")
        for i in range(2):
            sel = sSelE if i == 0 else sSelO
            for p in range(4):
                P(f"v_perm_b32 {v(VT[i]+p)}, {v(W[ku][2*p+1])}, {v(W[ku][2*p])}, s{sel}")
        for i in range(2):
            for mt in range(2):
                C = "0" if ku == 0 else vr(ACC[mt][i], 4)
                P(f"v_mfma_f32_16x16x32_bf16 {vr(ACC[mt][i],4)}, {vr(XA[ku][mt],4)}, {vr(VT[i],4)}, {C}")
    P.stamp("mfma")
    P.nop(8)
    P(f"s_lshl_b32 s{sT}, s{sWave}, 12")
    P(f"v_lshlrev_b32 {v(t1)}, 4, {v(vLane)}")
    P(f"v_add_u32 {v(t3)}, s{sT}, {v(t1)}")
    for mt in range(2):
        for i in range(2):
            P(f"ds_write_b128 {v(t3)}, {vr(ACC[mt][i],4)} offset:{(mt*2+i)*1024}")
    P(f"s_waitcnt lgkmcnt(0)")
    P(f"s_barrier")
    P.stamp("barrier")
    P(f"s_lshr_b32 s{sT}, s{sWave}, 1")
    P(f"s_lshl_b32 s{sT}, s{sT}, 11", "mt*2048")
    P(f"s_and_b32 s{sT2}, s{sWave}, 1")
    P(f"s_lshl_b32 s{sT2}, s{sT2}, 3")
    P(f"s_add_u32 s{sT}, s{sT}, s{sT2}")
    P(f"v_add_u32 {v(t3)}, s{sT}, {v(t1)}")
    for w in range(4):
        for i in range(2):
            P(f"ds_read_b64 {vr(R[w][i],2)}, {v(t3)} offset:{w*4096 + i*1024}")
    P(f"s_waitcnt lgkmcnt(0)")
    for w in range(1, 4):
        for i in range(2):
            for rr in range(2):
                P(f"v_add_f32 {v(R[0][i]+rr)}, {v(R[0][i]+rr)}, {v(R[w][i]+rr)}")
    for rr in range(2):
        P(f"v_cvt_pk_bf16_f32 {v(OUTR+rr)}, {v(R[0][0]+rr)}, {v(R[0][1]+rr)}")
    P(f"v_lshlrev_b32 {v(t1)}, 15, {v(vGp)}")
    P(f"v_lshlrev_b32 {v(t2)}, 2, {v(vC)}")
    P(f"v_add_u32 {v(t1)}, {v(t1)}, {v(t2)}")
    P(f"v_add_u32 {v(t2)}, 8192, {v(t1)}")
    P(f"s_lshr_b32 s{sT}, s{sWave}, 1")
    P(f"s_lshl_b32 s{sT}, s{sT}, 17")
    P(f"s_and_b32 s{sT2}, s{sWave}, 1")
    P(f"s_lshl_b32 s{sT2}, s{sT2}, 14")
    P(f"s_add_u32 s{sT}, s{sT}, s{sT2}")
    P(f"s_lshl_b32 s{sT2}, s{sCB}, 6")
    P(f"s_add_u32 s{sT}, s{sT}, s{sT2}")
    P(f"buffer_store_dword {v(OUTR)}, {v(t1)}, s[{SRD_S}:{SRD_S+3}], s{sT} offen")
    P(f"buffer_store_dword {v(OUTR+1)}, {v(t2)}, s[{SRD_S}:{SRD_S+3}], s{sT} offen")
    P.stamp("end")
    def slot():
        P(f"s_lshl_b32 s{sT}, s2, 2"); P(f"s_add_u32 s{sT}, s{sT}, s{sWave}"); return sT
    P.dump_stamps(SRD_S, slot, t1, t2, WS_PROF)
    P.label(f"{name}_end")
    P("s_endpgm")
    probs = verify(P, name)
    return P, NVGPR, (100 if prof else NSGPR), 16384, probs


def gen_k3c(name="oproj_kernel", nt=True, prof=False):
    P = Prog(prof)
    NTs = " nt" if nt else ""
    SRD_O, SRD_S = 12, 16
    sWave, sT, sT2, sSelE, sSelO, sWo, sML, sC1 = 24, 25, 26, 27, 28, 29, 30, 31
    sPO = 32
    sH, sHH, sHKV, sMT, sIH = 40, 41, 42, 43, 44
    NSGPR = 48
    va = VAlloc(1)
    vLane = va(); vC = va(); vGp = va(); t1 = va(); t2 = va(); t3 = va()
    vWo = [va() for j in range(4)]
    vPO = va(); vML = va()
    VT = [va(4, 4) for _ in range(2)]
    A = va(4, 4)
    F = [va() for sg in range(4)]; vMx = va(); vLs = va()
    ML = [va(2, 2) for sg in range(4)]
    ACC = [va(4, 4) for ii in range(4)]
    G = va(16, 4)
    W = [[va(2, 2) for j in range(8)] for st in range(2)]
    PO = [[[va(4, 4) for e in range(2)] for sg in range(4)] for st in range(2)]
    NVGPR = va.n
    P(f"s_cmp_ge_u32 s2, 128")
    P(f"s_cbranch_scc1 {name}_end")
    P.stamp("start")
    P(f"s_load_dwordx2 s[4:5], s[0:1], 32", "wo")
    P(f"s_load_dwordx2 s[8:9], s[0:1], 56", "ws")
    P(f"v_lshrrev_b32 {v(t1)}, 6, v0")
    P(f"v_and_b32 {v(vLane)}, 63, v0")
    P(f"v_readfirstlane_b32 s{sWave}, {v(t1)}")
    P(f"v_and_b32 {v(vC)}, 15, {v(vLane)}")
    P(f"v_lshrrev_b32 {v(vGp)}, 4, {v(vLane)}")
    P(f"v_lshlrev_b32 {v(t1)}, 11, {v(vGp)}")
    P(f"v_lshlrev_b32 {v(t2)}, 4, {v(vC)}")
    P(f"v_add_u32 {v(vWo[0])}, {v(t1)}, {v(t2)}")
    for j in range(1, 4):
        P(f"v_add_u32 {v(vWo[j])}, {j*8192}, {v(vWo[0])}")
    P(f"v_lshlrev_b32 {v(vPO)}, 4, {v(vLane)}")
    P(f"v_lshrrev_b32 {v(t2)}, 2, {v(vC)}")
    P(f"v_lshlrev_b32 {v(t2)}, 12, {v(t2)}")
    P(f"v_and_b32 {v(t3)}, 3, {v(vC)}")
    P(f"v_lshlrev_b32 {v(t3)}, 3, {v(t3)}")
    P(f"v_add_u32 {v(vML)}, {v(t2)}, {v(t3)}")
    P(f"s_lshr_b32 s{sH}, s2, 2")
    P(f"s_and_b32 s{sHH}, s{sH}, 3")
    P(f"s_lshr_b32 s{sHKV}, s{sH}, 2")
    P(f"s_waitcnt lgkmcnt(0)")
    P.stamp("kernarg")
    P(f"s_lshr_b32 s{sMT}, s{sWave}, 1")
    P(f"s_and_b32 s{sIH}, s{sWave}, 1")
    for (srd, lo, nb) in ((SRD_O, 4, 4194304), (SRD_S, 8, WS_USED)):
        P(f"s_mov_b32 s{srd}, s{lo}")
        P(f"s_mov_b32 s{srd+1}, s{lo+1}")
        P(f"s_mov_b32 s{srd+2}, {nb}")
        P(f"s_mov_b32 s{srd+3}, 0x00020000")
    P(f"s_lshl_b32 s{sT}, s{sHKV}, 9")
    P(f"s_lshl_b32 s{sT2}, s{sHH}, 5")
    P(f"s_add_u32 s{sML}, s{sT}, s{sT2}")
    P(f"s_lshl_b32 s{sT2}, s{sMT}, 14")
    P(f"s_add_u32 s{sML}, s{sML}, s{sT2}")
    P(f"s_add_u32 s{sML}, s{sML}, {WS_PML}")
    for sg in range(4):
        P(f"buffer_load_dwordx2 {vr(ML[sg],2)}, {v(vML)}, s[{SRD_S}:{SRD_S+3}], s{sML} offen offset:{sg*128}")
    P(f"s_lshl_b32 s{sT}, s{sHKV}, 18")
    P(f"s_lshl_b32 s{sT2}, s{sHH}, 16")
    P(f"s_add_u32 s{sPO}, s{sT}, s{sT2}")
    P(f"s_lshl_b32 s{sT2}, s{sMT}, 13")
    P(f"s_add_u32 s{sPO}, s{sPO}, s{sT2}")
    P(f"s_add_u32 s{sPO}, s{sPO}, {WS_PO}")
    P(f"s_lshl_b32 s{sWo}, s{sH}, 17")
    P(f"s_and_b32 s{sT2}, s2, 3")
    P(f"s_lshl_b32 s{sT2}, s{sT2}, 8")
    P(f"s_add_u32 s{sWo}, s{sWo}, s{sT2}")
    P(f"s_lshl_b32 s{sT2}, s{sIH}, 3")
    P(f"s_add_u32 s{sWo}, s{sWo}, s{sT2}")
    P(f"s_mov_b32 s{sC1}, {f32hex(C1)}")
    P(f"s_mov_b32 s{sSelE}, 0x05040100")
    P(f"s_mov_b32 s{sSelO}, 0x07060302")
    def issue(ku):
        st = ku % 2
        for j in range(8):
            P(f"buffer_load_dwordx2 {vr(W[st][j],2)}, {v(vWo[j&3])}, s[{SRD_O}:{SRD_O+3}], s{sWo} offen offset:{(j>>2)*1024}{NTs}")
        P(f"s_add_u32 s{sWo}, s{sWo}, 32768")
        P(f"s_add_u32 s{sPO+1}, s{sPO}, 4096")
        for sg in range(4):
            for e in range(2):
                so = sPO if sg < 2 else sPO + 1
                P(f"buffer_load_dwordx4 {vr(PO[st][sg][e],4)}, {v(vPO)}, s[{SRD_S}:{SRD_S+3}], s{so} offen offset:{(sg & 1) * 2048 + e * 1024}")
        P(f"s_add_u32 s{sPO}, s{sPO}, 16384")
    issue(0); issue(1)
    P.stamp("issued")
    P(f"s_waitcnt vmcnt(32)", "ML landed")
    P(f"v_max_f32 {v(vMx)}, {v(ML[0])}, {v(ML[1])}")
    P(f"v_max3_f32 {v(vMx)}, {v(vMx)}, {v(ML[2])}, {v(ML[3])}")
    for sg in range(4): P(f"v_sub_f32 {v(F[sg])}, {v(ML[sg])}, {v(vMx)}")
    for sg in range(4): P(f"v_mul_f32 {v(F[sg])}, s{sC1}, {v(F[sg])}")
    for sg in range(4): P(f"v_exp_f32 {v(F[sg])}, {v(F[sg])}")
    P.nop(1)
    P(f"v_mul_f32 {v(vLs)}, {v(F[0])}, {v(ML[0]+1)}")
    for sg in range(1, 4):
        P(f"v_fma_f32 {v(vLs)}, {v(F[sg])}, {v(ML[sg]+1)}, {v(vLs)}")
    P(f"v_rcp_f32 {v(vLs)}, {v(vLs)}")
    P.nop(1)
    for sg in range(4): P(f"v_mul_f32 {v(F[sg])}, {v(F[sg])}, {v(vLs)}")
    P.stamp("F")
    for ku in range(4):
        st = ku % 2
        P(f"s_waitcnt vmcnt({16 if ku < 3 else 0})", f"dim group {ku} landed")
        X = PO[st]
        for e in range(2):
            for r in range(4): P(f"v_mul_f32 {v(X[0][e]+r)}, {v(F[0])}, {v(X[0][e]+r)}")
            for sg in range(1, 4):
                for r in range(4): P(f"v_fma_f32 {v(X[0][e]+r)}, {v(F[sg])}, {v(X[sg][e]+r)}, {v(X[0][e]+r)}")
        for e in range(2):
            for h2 in range(2):
                P(f"v_cvt_pk_bf16_f32 {v(A+2*e+h2)}, {v(X[0][e]+2*h2)}, {v(X[0][e]+2*h2+1)}")
        def perm(ii):
            sel = sSelE if (ii & 1) == 0 else sSelO
            for p in range(4):
                P(f"v_perm_b32 {v(VT[ii%2]+p)}, {v(W[st][2*p+1]+(ii>>1))}, {v(W[st][2*p]+(ii>>1))}, s{sel}")
        def mm(ii):
            C = "0" if ku == 0 else vr(ACC[ii], 4)
            P(f"v_mfma_f32_16x16x32_bf16 {vr(ACC[ii],4)}, {vr(A,4)}, {vr(VT[ii%2],4)}, {C}")
        perm(0)
        for ii in range(4):
            if ii + 1 < 4: perm(ii + 1)
            else: P.nop(1)
            mm(ii)
        if ku + 2 < 4: issue(ku + 2)
    P.stamp("mfma")
    P.nop(8)
    for r in range(4):
        for ii in range(4):
            P(f"v_mov_b32 {v(G+4*r+ii)}, {v(ACC[ii]+r)}")
    P(f"v_lshlrev_b32 {v(t1)}, 13, {v(vGp)}")
    P(f"v_lshlrev_b32 {v(t2)}, 5, {v(vC)}")
    P(f"v_add_u32 {v(t1)}, {v(t1)}, {v(t2)}")
    P(f"v_add_u32 {v(t2)}, 4096, {v(t1)}")
    P(f"s_lshl_b32 s{sT}, s{sH}, 16")
    P(f"s_and_b32 s{sT2}, s2, 3")
    P(f"s_lshl_b32 s{sT2}, s{sT2}, 9")
    P(f"s_add_u32 s{sT}, s{sT}, s{sT2}")
    P(f"s_lshl_b32 s{sT2}, s{sMT}, 15")
    P(f"s_add_u32 s{sT}, s{sT}, s{sT2}")
    P(f"s_lshl_b32 s{sT2}, s{sIH}, 4")
    P(f"s_add_u32 s{sT}, s{sT}, s{sT2}")
    P(f"s_add_u32 s{sT}, s{sT}, {WS_OP}")
    for r in range(4):
        P(f"buffer_store_dwordx4 {vr(G+4*r,4)}, {v(t1 if r < 2 else t2)}, s[{SRD_S}:{SRD_S+3}], s{sT} offen offset:{(r&1)*2048}")
    P.stamp("end")
    def slot():
        P(f"s_lshl_b32 s{sT}, s2, 2"); P(f"s_add_u32 s{sT}, s{sT}, s{sWave}"); return sT
    P.dump_stamps(SRD_S, slot, t1, t2, WS_PROF)
    P.label(f"{name}_end")
    P("s_endpgm")
    probs = verify(P, name)
    return P, NVGPR, (100 if prof else NSGPR), 0, probs

if __name__ == "__main__":
    P, nv, ns, lds, probs = gen_k2()
    print(P.text())
    print(nv, ns, lds)
    for p in probs: print(p)
```

```python
import sys
sys.path.insert(0, "dev")
import gen, mkasm
def kernels(WPW=4, NS=2, prof=None, k3b=1, k1b=1):
    ks = []
    if k1b:
        P, nv, ns, lds, pr = gen.gen_k1b("qproj_kernel", prof=(prof=="k1")); assert not pr, pr[:3]
        ks.append(("qproj_kernel", 128, 256, P, nv, ns, lds))
    else:
        P, nv, ns, lds, pr = gen.gen_k1("qproj_kernel", prof=(prof=="k1")); assert not pr, pr[:3]
        ks.append(("qproj_kernel", 32, 256, P, nv, ns, lds))
    P, nv, ns, lds, pr = gen.gen_k2("attn_kernel", WPW=WPW, NS=NS, nt=True, prof=(prof=="k2")); assert not pr, pr[:3]
    ks.append(("attn_kernel", 256, 64 * WPW, P, nv, ns, lds))
    if k3b == 2:
        P, nv, ns, lds, pr = gen.gen_k3c("oproj_kernel", prof=(prof=="k3")); assert not pr, pr[:3]
        ks.append(("oproj_kernel", 128, 256, P, nv, ns, lds))
    elif k3b:
        P, nv, ns, lds, pr = gen.gen_k3b("oproj_kernel", prof=(prof=="k3")); assert not pr, pr[:3]
        ks.append(("oproj_kernel", 128, 64, P, nv, ns, lds))
    else:
        P, nv, ns, lds, pr = gen.gen_k3("oproj_kernel", prof=(prof=="k3")); assert not pr, pr[:3]
        ks.append(("oproj_kernel", 128, 256, P, nv, ns, lds))
    P, nv, ns, lds, pr = gen.gen_k4("oreduce_kernel"); assert not pr, pr[:3]
    ks.append(("oreduce_kernel", 64, 64, P, nv, ns, lds))
    return ks, None
def build(path, **kw):
    ks, _ = kernels(**kw)
    mkasm.make(ks, path)
if __name__ == "__main__":
    path = sys.argv[1] if len(sys.argv) > 1 else "standalone__gqa_block_cached__sampling.s"
    build(path)
    print("wrote", path)
```
